```python
import torch

def _softmax(x, axis=-1):
    return torch.softmax(x, dim=axis)
def _gelu(x):
    return torch.nn.functional.gelu(x, approximate="tanh")
def _silu(x):
    return torch.nn.functional.silu(x)
def _sigmoid(x):
    return torch.sigmoid(x)
def _layernorm(x, axis=-1, eps=1e-5):
    m = x.mean(dim=axis, keepdim=True)
    v = x.var(dim=axis, keepdim=True, unbiased=False)
    return (x - m) / torch.sqrt(v + eps)
def _scatter_add(tgt, idx, src, axis=0):
    return tgt.clone().index_add_(axis, idx, src)
def _segment_sum(src, seg, n):
    out = torch.zeros((n,) + src.shape[1:], dtype=src.dtype)
    return out.index_add_(0, seg, src)
def _pad(x, pw):
    flat = tuple(v for pair in reversed(pw) for v in pair)
    return torch.nn.functional.pad(x, flat)

kernel_name = 'concat_heads__grouped_kv_mqa__spectral_fnet__prompt'

def setup_inputs():

    _w = (lambda a: (lambda t: t.to(torch.bfloat16) if t.is_floating_point() else t)(torch.as_tensor(a)))
    def _A_setup():
        B, S, D, H = 1, 2048, 1024, 32
        Dh = D // H
        return {
            "x": _w((lambda *s: torch.randn(*s, dtype=torch.bfloat16) * 0.05)(B, S, D)),
            "wq": _w((lambda *s: torch.randn(*s, dtype=torch.bfloat16) * 3.2)(D, H * Dh)),
            "wk": _w((lambda *s: torch.randn(*s, dtype=torch.bfloat16) * 3.2)(D, Dh)),
            "wv": _w((lambda *s: torch.randn(*s, dtype=torch.bfloat16) * 0.4)(D, Dh)),
            "wo": _w((lambda *s: torch.randn(*s, dtype=torch.bfloat16) * 0.4)(H * Dh, D)),
        }
    _A_in = _A_setup()

    def _B_setup():
        B, S, D = 1, 2048, 1024
        ns = torch.arange(S)[:, None] * torch.arange(S)[None, :]
        nd = torch.arange(D)[:, None] * torch.arange(D)[None, :]
        Ws_re = torch.cos(-2.0 * torch.pi * ns / S).to(float)
        Ws_im = torch.sin(-2.0 * torch.pi * ns / S).to(float)
        Wd_re = torch.cos(-2.0 * torch.pi * nd / D).to(float)
        Wd_im = torch.sin(-2.0 * torch.pi * nd / D).to(float)
        return {
            "x": _w((lambda *s: torch.randn(*s, dtype=torch.bfloat16) * 0.05)(B, S, D)),
            "dft_seq_re": _w(Ws_re),
            "dft_seq_im": _w(Ws_im),
            "dft_hid_re": _w(Wd_re),
            "dft_hid_im": _w(Wd_im),
        }
    _B_in = _B_setup()

    return {
        "A_x": _A_in["x"],
        "A_wq": _A_in["wq"],
        "A_wk": _A_in["wk"],
        "A_wv": _A_in["wv"],
        "A_wo": _A_in["wo"],
        "B_x": _B_in["x"],
        "B_dft_seq_re": _B_in["dft_seq_re"],
        "B_dft_seq_im": _B_in["dft_seq_im"],
        "B_dft_hid_re": _B_in["dft_hid_re"],
        "B_dft_hid_im": _B_in["dft_hid_im"],
    }

def reference(A_x, A_wq, A_wk, A_wv, A_wo, B_x, B_dft_seq_re, B_dft_seq_im, B_dft_hid_re, B_dft_hid_im):
    def _A_ref(x, wq, wk, wv, wo):
        B, S, D = x.shape
        H = 32
        Dh = D // H
        q = (lambda x, *d: x.permute(*d))((x @ wq).reshape(B, S, H, Dh), 0, 2, 1, 3)
        k = x @ wk
        v = x @ wv
        scores = torch.einsum("bhqd,bkd->bhqk", q, k) * (Dh ** -0.5)
        p = _softmax(scores, axis=-1)
        o = torch.einsum("bhqk,bkd->bhqd", p, v)
        return (lambda x, *d: x.permute(*d))(o, 0, 2, 1, 3).reshape(B, S, H * Dh) @ wo

    def _B_ref(x, dft_seq_re, dft_seq_im, dft_hid_re, dft_hid_im):
        a = torch.einsum("bsd,ed->bse", x, dft_hid_re)
        b = torch.einsum("bsd,ed->bse", x, dft_hid_im)
        y = torch.einsum("ts,bse->bte", dft_seq_re, a) - torch.einsum("ts,bse->bte", dft_seq_im, b)
        return y

    a = _A_ref(A_x, A_wq, A_wk, A_wv, A_wo)
    b = _B_ref(B_x, B_dft_seq_re, B_dft_seq_im, B_dft_hid_re, B_dft_hid_im)
    return torch.concatenate([a, b], axis=-1)
```

```python
import struct
NAME = "concat_heads__grouped_kv_mqa__spectral_fnet__prompt"

KA = dict(A_x=0, wq=8, wk=16, wv=24, wo=32, B_x=40, seq_re=48, seq_im=56, hid_re=64, hid_im=72, out=80, dbg=88, ws=96)
WS_Q  = 0
WS_KV = 4 << 20
WS_O  = 5 << 20
WS_F  = 10 << 20
WS_G  = 14 << 20
WS_SIZE = 268435456
F_PITCH = 640
F_ROWS = 576
F_CLS = F_ROWS * F_PITCH
G_EB = 36 * 1024
G_CLS = 9 * G_EB

def f32bits(x):
    return struct.unpack("<I", struct.pack("<f", x))[0]

class Asm:
    def __init__(self):
        self.l = []
        self.uid = 0
    def __call__(self, s):
        for line in s.split("\n"):
            line = line.strip()
            if line:
                self.l.append(("" if line.endswith(":") else "  ") + line)
    def label(self, base):
        self.uid += 1
        return f"L_{base}_{self.uid}"
    def text(self):
        return "\n".join(self.l) + "\n"

def kernel_begin(a, name):
    a.l.append(".text")
    a.l.append(f".globl {name}")
    a.l.append(".p2align 8")
    a.l.append(f".type {name},@function")
    a.l.append(f"{name}:")

def kernel_end(a, name, vgpr, sgpr=96, agpr=0):
    acc = (vgpr + 3) // 4 * 4
    nfv = acc + agpr if agpr else vgpr
    a.l.append('.section .rodata,"a"')
    a.l.append(".p2align 6")
    a.l.append(f".amdhsa_kernel {name}")
    a.l.append(f"  .amdhsa_next_free_vgpr {nfv}")
    a.l.append(f"  .amdhsa_next_free_sgpr {sgpr}")
    a.l.append(f"  .amdhsa_accum_offset {acc}")
    a.l.append("  .amdhsa_group_segment_fixed_size 0")
    a.l.append("  .amdhsa_kernarg_size 104")
    a.l.append("  .amdhsa_user_sgpr_count 2")
    a.l.append("  .amdhsa_user_sgpr_kernarg_segment_ptr 1")
    a.l.append("  .amdhsa_system_sgpr_workgroup_id_x 1")
    a.l.append(".end_amdhsa_kernel")

def load_ptr(a, sdst, name):
    a(f"s_load_dwordx2 s[{sdst}:{sdst+1}], s[0:1], {KA[name]}")

def make_srd(a, srd, sptr, nbytes, add=0):
    if add:
        a(f"s_add_u32 s{srd}, s{sptr}, {add}")
        a(f"s_addc_u32 s{srd+1}, s{sptr+1}, 0")
    else:
        a(f"s_mov_b32 s{srd}, s{sptr}")
        a(f"s_mov_b32 s{srd+1}, s{sptr+1}")
    a(f"s_mov_b32 s{srd+2}, {nbytes}")
    a(f"s_mov_b32 s{srd+3}, 0x20000")

def vr(b, n):
    return f"v[{b}:{b+n-1}]"

def mfma32(d, A, B, c=None):
    c = vr(d, 16) if c is None else (c if isinstance(c, str) else vr(c, 16))
    return f"v_mfma_f32_32x32x16_bf16 {vr(d,16)}, {vr(A,4)}, {vr(B,4)}, {c}"

def mfma16(d, A, B, c=None):
    c = vr(d, 4) if c is None else (c if isinstance(c, str) else vr(c, 4))
    return f"v_mfma_f32_16x16x32_bf16 {vr(d,4)}, {vr(A,4)}, {vr(B,4)}, {c}"

import os
TIMING = bool(os.environ.get("TIMING"))
_ht = 0
def stamp_begin(a):
    if os.environ.get("PERM"):
        a("s_and_b32 s3, s2, 7")
        a("s_lshl_b32 s3, s3, 5")
        a("s_lshr_b32 s2, s2, 3")
        a("s_or_b32 s2, s2, s3")
    if os.environ.get("HT"):
        global _ht
        _ht += 1
        a("s_memrealtime s[86:87]")
        a("s_load_dwordx4 s[92:95], s[0:1], 88")
        if _ht == 1:
            L = a.label("ht")
            a("s_waitcnt lgkmcnt(0)")
            a("s_cmp_lg_u32 s2, 0")
            a(f"s_cbranch_scc1 {L}")
            a("v_mov_b32 v1, 0x10000")
            a("v_mov_b32 v2, s86")
            a("global_store_dword v1, v2, s[94:95]")
            a(f"{L}:")
    if not TIMING: return
    a("s_memtime s[84:85]")
    a("s_memrealtime s[86:87]")
    a("s_load_dwordx2 s[92:93], s[0:1], 88")
    if os.environ.get("XCC"):
        L = a.label("noxcc")
        a("s_getreg_b32 s94, hwreg(HW_REG_XCC_ID)")
        a("s_waitcnt lgkmcnt(0)")
        a("s_cmp_ge_u32 s2, 16")
        a(f"s_cbranch_scc1 {L}")
        a("s_lshl_b32 s95, s2, 2")
        a("v_mov_b32 v1, s95")
        a("v_mov_b32 v2, s94")
        a("global_store_dword v1, v2, s[92:93] offset:192")
        a(f"{L}:")
WGS = int(os.environ.get('WGS', '0'))
def stamp_end(a, wg=WGS):
    if os.environ.get("HT") and _ht == 2:
        L = a.label("ht")
        a("s_cmp_ge_u32 s2, 8")
        a(f"s_cbranch_scc1 {L}")
        a("v_mov_b32 v1, 0x10000")
        a("global_load_dword v3, v1, s[94:95]")
        a("s_waitcnt vmcnt(0) lgkmcnt(0)")
        a("s_memrealtime s[88:89]")
        a("s_waitcnt lgkmcnt(0)")
        a("v_sub_u32 v2, s86, v3")
        a("v_sub_u32 v3, s88, v3")
        a("s_lshl_b32 s88, s2, 3")
        a("v_mov_b32 v1, s88")
        a("global_store_dwordx2 v1, v[2:3], s[92:93]")
        a(f"{L}:")
    if not TIMING: return
    L = a.label("nostamp")
    a("s_waitcnt vmcnt(0) lgkmcnt(0)")
    a("s_memtime s[88:89]")
    a("s_memrealtime s[90:91]")
    a("s_waitcnt lgkmcnt(0)")
    a("s_sub_u32 s88, s88, s84")
    a("s_sub_u32 s90, s90, s86")
    a(f"s_cmp_lg_u32 s2, {wg}")
    a(f"s_cbranch_scc1 {L}")
    a("v_lshrrev_b32 v1, 6, v0")
    a("v_lshlrev_b32 v1, 3, v1")
    a("v_mov_b32 v2, s88")
    a("v_mov_b32 v3, s90")
    a("global_store_dwordx2 v1, v[2:3], s[92:93] offset:256")
    a(f"{L}:")

_marks = [0]
def mark(a, i):
    if not TIMING: return
    a("s_memtime s[94:95]")
    a("s_waitcnt lgkmcnt(0)")
    a(f"s_sub_u32 s{76+i}, s94, s84")
def dump_marks(a, wg=WGS):
    if not TIMING: return
    L = a.label("nomark")
    a(f"s_cmp_lg_u32 s2, {wg}")
    a(f"s_cbranch_scc1 {L}")
    a("v_lshrrev_b32 v1, 6, v0")
    a("v_lshlrev_b32 v1, 4, v1")
    for i in range(4): a(f"v_mov_b32 v{4+i}, s{76+i}")
    a("global_store_dwordx4 v1, v[4:7], s[92:93] offset:352")
    a(f"{L}:")
```

```python
from common import *

class Piece:
    def __init__(self, srd, v, sbase, kinc, imm, lbase, limm):
        self.srd, self.v, self.sbase, self.kinc, self.imm, self.lbase, self.limm = srd, v, sbase, kinc, imm, lbase, limm

class Frag:
    def __init__(self, kind, addr, regs):
        self.kind, self.addr, self.regs = kind, addr, regs

def gemm_loop(a, nk, nslots, stage_bytes, pieces, frags, mfmas, abank, stmp, first_c_zero=True, nsub=4, hook=None):
    D = nslots
    npc = len(pieces)
    def issue(stage):
        slot = stage % D
        for p in pieces:
            a(f"s_add_u32 m0, s{p.lbase}, {slot*stage_bytes + p.limm}")
            off = stage * p.kinc + p.imm
            if p.sbase is None:
                a(f"s_mov_b32 s{stmp}, {off}")
            else:
                a(f"s_add_u32 s{stmp}, s{p.sbase}, {off}")
            a(f"buffer_load_dwordx4 v{p.v}, s[{p.srd}:{p.srd+3}], s{stmp} offen lds")
    def reads(stage, u, buf):
        slot = stage % D
        n = 0
        for f in frags:
            r = f.regs[buf]
            if f.kind == 'b128':
                idx, imm = f.addr(u)
                off = slot * stage_bytes + imm
                a(f"ds_read_b128 {vr(r,4)}, v{abank(idx, off >> 16)} offset:{off & 0xffff}")
                n += 1
            else:
                idx, imm0, imm1 = f.addr(u)
                for j, imm in enumerate((imm0, imm1)):
                    off = slot * stage_bytes + imm
                    a(f"ds_read_b64_tr_b16 {vr(r+2*j,2)}, v{abank(idx, off >> 16)} offset:{off & 0xffff}")
                    n += 1
        return n
    def outstanding_after(need, issued):
        return max(0, issued - need) * npc
    issued = min(D - 2, nk - 1)
    for s in range(issued + 1):
        issue(s)
    a(f"s_waitcnt vmcnt({min(63, outstanding_after(0, issued))})")
    a("s_barrier")
    mark(a, 0)
    buf = 0
    reads(0, 0, buf)
    for k in range(nk):
        if k + 1 < nk:
            a(f"s_waitcnt vmcnt({min(63, outstanding_after(k+1, issued))})")
            a("s_barrier")
            if k + D - 1 < nk:
                issue(k + D - 1)
                issued = k + D - 1
        if hook: hook(k)
        if k == nk // 2: mark(a, 1)
        for u in range(nsub):
            last = (k == nk - 1 and u == nsub - 1)
            if not last:
                n = reads(k, u + 1, buf ^ 1) if u + 1 < nsub else reads(k + 1, 0, buf ^ 1)
                a(f"s_waitcnt lgkmcnt({n})")
            else:
                a("s_waitcnt lgkmcnt(0)")
            for (acc, fa, fb) in mfmas:
                c = "0" if (first_c_zero and k == 0 and u == 0) else None
                a(mfma32(acc, frags[fa].regs[buf], frags[fb].regs[buf], c))
            buf ^= 1
    mark(a, 2)


class Group:
    def __init__(self, srd, sbase, kshift, lbase, items):
        self.srd, self.sbase, self.kshift, self.lbase, self.items = srd, sbase, kshift, lbase, items

class Ring:
    def __init__(self, a, nk, slots, groups, frags, mfmas, vbase, vaddr, sregs):
        self.a, self.nk, self.slots, self.groups, self.frags, self.mfmas = a, nk, slots, groups, frags, mfmas
        self.vbase, self.vaddr = vbase, vaddr
        self.S_KK, self.S_W0, self.S_CNT, self.S_T, self.S_T2 = sregs[:5]
        self.S_SL = sregs[5:5 + len(slots)]
        self.np = sum(len(g.items) for g in groups)
    def adv_k(self):
        a = self.a
        if self.nk & (self.nk - 1) == 0:
            a(f"s_add_u32 s{self.S_KK}, s{self.S_KK}, 1")
            a(f"s_and_b32 s{self.S_KK}, s{self.S_KK}, {self.nk-1}")
        else:
            a(f"s_add_u32 s{self.S_KK}, s{self.S_KK}, 1")
            a(f"s_cmp_eq_u32 s{self.S_KK}, {self.nk}")
            a(f"s_cselect_b32 s{self.S_KK}, 0, s{self.S_KK}")
    def issue(self, slot):
        a = self.a
        for g in self.groups:
            a(f"s_lshl_b32 s{self.S_T}, s{self.S_KK}, {g.kshift}")
            a(f"s_add_u32 s{self.S_T}, s{self.S_T}, s{g.sbase}")
            if isinstance(slot, int):
                base, add = g.lbase, slot
            else:
                a(f"s_add_u32 s{self.S_T2}, s{g.lbase}, {slot}")
                base, add = self.S_T2, 0
            for (v, limm) in g.items:
                a(f"s_add_u32 m0, s{base}, {add + limm}")
                a("s_nop 0")
                a(f"buffer_load_dwordx4 v{v}, s[{g.srd}:{g.srd+3}], s{self.S_T} offen lds")
        self.adv_k()
    def prologue(self):
        D = len(self.slots)
        for s in range(D - 1):
            self.issue(self.slots[s])
    def set_addr(self, slot):
        for b, d in zip(self.vbase, self.vaddr):
            self.a(f"v_add_u32 v{d}, {slot}, v{b}")
    def reads(self, u, buf):
        a = self.a; n = 0
        for f in self.frags:
            r = f.regs[buf]
            if f.kind == 'b128':
                idx, imm = f.addr(u)
                a(f"ds_read_b128 {vr(r,4)}, v{self.vaddr[idx]} offset:{imm}"); n += 1
            else:
                idx, imm0, imm1 = f.addr(u)
                for j, imm in enumerate((imm0, imm1)):
                    a(f"ds_read_b64_tr_b16 {vr(r+2*j,2)}, v{self.vaddr[idx]} offset:{imm}"); n += 1
        return n
    def run(self, first_wait=None):
        a = self.a; D = len(self.slots); nk = self.nk
        for (acc, _, _) in self.mfmas:
            for r in range(16): a(f"v_mov_b32 v{acc+r}, 0")
        for i, s in enumerate(self.S_SL):
            a(f"s_mov_b32 s{s}, {self.slots[i]}")
        self.set_addr(self.slots[0])
        a(f"s_mov_b32 s{self.S_CNT}, 0")
        a(f"s_waitcnt vmcnt({(D-2)*self.np if first_wait is None else first_wait})")
        a("s_barrier")
        mark(a, 0)
        self.reads(0, 0)
        L, Lt, Lj = a.label("gl"), a.label("gt"), a.label("gj")
        a(f"{L}:")
        a(f"s_cmp_ge_u32 s{self.S_CNT}, {nk - (D - 1)}")
        a(f"s_cbranch_scc1 {Lt}")
        a(f"s_waitcnt vmcnt({(D-3)*self.np})")
        a("s_barrier")
        self.issue(f"s{self.S_SL[D-1]}")
        a(f"s_branch {Lj}")
        a(f"{Lt}:")
        a("s_waitcnt vmcnt(0)")
        a("s_barrier")
        a(f"{Lj}:")
        buf = 0
        for u in range(4):
            if u == 3:
                self.set_addr(f"s{self.S_SL[1]}")
                a(f"s_mov_b32 s{self.S_T}, s{self.S_SL[0]}")
                for i in range(D - 1):
                    a(f"s_mov_b32 s{self.S_SL[i]}, s{self.S_SL[i+1]}")
                a(f"s_mov_b32 s{self.S_SL[D-1]}, s{self.S_T}")
            n = self.reads((u + 1) & 3, buf ^ 1)
            a(f"s_waitcnt lgkmcnt({n})")
            for (acc, fa, fb) in self.mfmas:
                a(mfma32(acc, self.frags[fa].regs[buf], self.frags[fb].regs[buf]))
            buf ^= 1
        a(f"s_add_u32 s{self.S_CNT}, s{self.S_CNT}, 1")
        a(f"s_cmp_lt_u32 s{self.S_CNT}, {nk}")
        a(f"s_cbranch_scc1 {L}")
        a("s_waitcnt lgkmcnt(0)")
        mark(a, 2)


class Phase:
    def __init__(self, nk, skk, groups, frags, mfmas, vbase, vaddr):
        self.nk, self.skk, self.groups, self.frags, self.mfmas, self.vbase, self.vaddr = nk, skk, groups, frags, mfmas, vbase, vaddr
        self.np = sum(len(g.items) for g in groups)

class Pipe:
    def __init__(self, a, D, slot, sregs):
        self.a, self.D, self.slot = a, D, slot
        self.S_SL, self.S_CNT, self.S_T, self.S_T2 = sregs[:4]
    def adv_slot(self):
        a = self.a
        a(f"s_add_u32 s{self.S_SL}, s{self.S_SL}, {self.slot}")
        a(f"s_cmp_eq_u32 s{self.S_SL}, {self.D*self.slot}")
        a(f"s_cselect_b32 s{self.S_SL}, 0, s{self.S_SL}")
    def issue(self, ph):
        a = self.a
        for g in ph.groups:
            a(f"s_lshl_b32 s{self.S_T}, s{ph.skk}, {g.kshift}")
            a(f"s_add_u32 s{self.S_T}, s{self.S_T}, s{g.sbase}")
            a(f"s_add_u32 s{self.S_T2}, s{g.lbase}, s{self.S_SL}")
            for (v, limm) in g.items:
                a(f"s_add_u32 m0, s{self.S_T2}, {limm}")
                a("s_nop 0")
                if not os.environ.get("NODMA"):
                    a(f"buffer_load_dwordx4 v{v}, s[{g.srd}:{g.srd+3}], s{self.S_T} offen lds")
        a(f"s_add_u32 s{ph.skk}, s{ph.skk}, 1")
        if ph.nk & (ph.nk - 1) == 0:
            a(f"s_and_b32 s{ph.skk}, s{ph.skk}, {ph.nk-1}")
        else:
            a(f"s_cmp_eq_u32 s{ph.skk}, {ph.nk}")
            a(f"s_cselect_b32 s{ph.skk}, 0, s{ph.skk}")
        self.adv_slot()
    def loader_prologue(self, ph):
        a = self.a
        a(f"s_mov_b32 s{self.S_SL}, 0")
        self.issue(ph)
        self.issue(ph)
    def loader_first(self, ph):
        a = self.a
        assert self.D in (4, 5)
        a(f"s_waitcnt vmcnt({ph.np})")
        a("s_barrier")
        self.issue(ph)
        a(f"s_waitcnt vmcnt({ph.np})")
        a("s_barrier")
        self.issue(ph)
        if self.D == 5: self.issue(ph)
    def loader_loop(self, ph, count, N):
        a = self.a
        a(f"s_mov_b32 s{self.S_CNT}, 0")
        L = a.label("ll")
        a(f"{L}:")
        a(f"s_waitcnt vmcnt({N})")
        a("s_barrier")
        self.issue(ph)
        a(f"s_add_u32 s{self.S_CNT}, s{self.S_CNT}, 1")
        a(f"s_cmp_lt_u32 s{self.S_CNT}, {count}")
        a(f"s_cbranch_scc1 {L}")
    def loader_tail(self, np_last):
        a = self.a
        for i in range(self.D - 2):
            a(f"s_waitcnt vmcnt({(self.D-3-i)*np_last})")
            a("s_barrier")
    def set_addr(self, ph):
        for b, d in zip(ph.vbase, ph.vaddr):
            self.a(f"v_add_u32 v{d}, s{self.S_SL}, v{b}")
    def reads(self, ph, u, buf):
        a = self.a; n = 0
        if os.environ.get("NOREAD"): return 0
        for f in ph.frags:
            r = f.regs[buf]
            if f.kind == 'b128':
                idx, imm = f.addr(u)
                a(f"ds_read_b128 {vr(r,4)}, v{ph.vaddr[idx]} offset:{imm}"); n += 1
            else:
                idx, imm0, imm1 = f.addr(u)
                for j, imm in enumerate((imm0, imm1)):
                    a(f"ds_read_b64_tr_b16 {vr(r+2*j,2)}, v{ph.vaddr[idx]} offset:{imm}"); n += 1
        return n
    def read_list(self, ph, u, buf):
        out = []
        if os.environ.get("NOREAD"): return out
        for f in ph.frags:
            r = f.regs[buf]
            if f.kind == 'b128':
                idx, imm = f.addr(u)
                out.append(f"ds_read_b128 {vr(r,4)}, v{ph.vaddr[idx]} offset:{imm}")
            else:
                idx, imm0, imm1 = f.addr(u)
                for j, imm in enumerate((imm0, imm1)):
                    out.append(f"ds_read_b64_tr_b16 {vr(r+2*j,2)}, v{ph.vaddr[idx]} offset:{imm}")
        return out
    def compute(self, ph, first, last_phase_sgpr=None, pre_bar=None, post_bar=None):
        a = self.a
        for (acc, _, _) in ph.mfmas:
            for r in range(16): a(f"v_mov_b32 v{acc+r}, 0")
        if first:
            a(f"s_mov_b32 s{self.S_SL}, 0")
        self.set_addr(ph)
        a(f"s_mov_b32 s{self.S_CNT}, 0")
        if first:
            a("s_barrier")
            mark(a, 0)
        for u in range(3):
            n = self.reads(ph, u, u)
        L, Lnb = a.label("gl"), a.label("gnb")
        a(f"{L}:")
        self.adv_slot()
        if last_phase_sgpr is None:
            a(f"s_cmp_eq_u32 s{self.S_CNT}, {ph.nk-1}")
        else:
            a(f"s_cmp_eq_u32 s{self.S_CNT}, s{last_phase_sgpr}")
        a(f"s_cbranch_scc1 {Lnb}")
        if pre_bar: pre_bar()
        a("s_barrier")
        if post_bar: post_bar()
        a(f"{Lnb}:")
        if TIMING and os.environ.get("STEPS") and first:
            Ls = a.label("nost")
            a("s_memtime s[94:95]")
            a("s_waitcnt lgkmcnt(0)")
            a("s_sub_u32 s94, s94, s84")
            a("s_cmp_lg_u32 s2, 0")
            a(f"s_cbranch_scc1 {Ls}")
            a(f"s_lshl_b32 s95, s{self.S_CNT}, 2")
            a("v_mov_b32 v1, s95")
            a("v_mov_b32 v2, s94")
            a("global_store_dword v1, v2, s[92:93] offset:512")
            a(f"{Ls}:")
        nm = len(ph.mfmas)
        for u in range(4):
            a(f"s_waitcnt lgkmcnt({min(15, 2*n)})")
            rl = self.read_list(ph, (u + 3) & 3, (u + 3) & 3)
            per = (len(rl) + nm - 1) // nm
            for i, (acc, fa, fb) in enumerate(ph.mfmas):
                if not os.environ.get("NOMFMA"):
                    a(mfma32(acc, ph.frags[fa].regs[u], ph.frags[fb].regs[u]))
                for x in rl[i*per:(i+1)*per]: a(x)
            if u == 0:
                self.set_addr(ph)
        a(f"s_add_u32 s{self.S_CNT}, s{self.S_CNT}, 1")
        a(f"s_cmp_lt_u32 s{self.S_CNT}, {ph.nk}")
        a(f"s_cbranch_scc1 {L}")
        a("s_waitcnt lgkmcnt(0)")

def lane_wave(a, vlane, swave):
    a(f"v_lshrrev_b32 v1, 6, v0")
    a(f"v_and_b32 v{vlane}, 63, v0")
    a(f"v_readfirstlane_b32 s{swave}, v1")

def rm_voff(a, vdst, vlane, piece_parity, pitch_log2=None, pitch=None, t0=1, t1=2):
    a(f"v_lshrrev_b32 v{t0}, 4, v{vlane}")
    if piece_parity:
        a(f"v_add_u32 v{t0}, 4, v{t0}")
    a(f"v_and_b32 v{t1}, 7, v{vlane}")
    a(f"v_xor_b32 v{t0}, v{t0}, v{t1}")
    a(f"v_lshlrev_b32 v{t0}, 4, v{t0}")
    a(f"v_lshrrev_b32 v{t1}, 3, v{vlane}")
    if pitch_log2 is not None:
        a(f"v_lshl_add_u32 v{vdst}, v{t1}, {pitch_log2}, v{t0}")
    else:
        a(f"v_mul_u32_u24 v{t1}, {pitch}, v{t1}")
        a(f"v_add_u32 v{vdst}, v{t1}, v{t0}")

def rm_frag_addr(a, vdst, vlane, t0=1, t1=2):
    a(f"v_bfe_u32 v{t0}, v{vlane}, 1, 3")
    a(f"v_lshrrev_b32 v{t1}, 5, v{vlane}")
    a(f"v_xor_b32 v{t0}, v{t0}, v{t1}")
    a(f"v_lshlrev_b32 v{t0}, 4, v{t0}")
    a(f"v_and_b32 v{t1}, 31, v{vlane}")
    a(f"v_lshl_add_u32 v{vdst}, v{t1}, 7, v{t0}")

def kn_voff(a, vdst, vlane, pitch_log2, t0=1, t1=2):
    a(f"v_bfe_u32 v{t0}, v{vlane}, 4, 1")
    a(f"v_lshlrev_b32 v{t0}, 2, v{t0}")
    a(f"v_and_b32 v{t1}, 7, v{vlane}")
    a(f"v_xor_b32 v{t0}, v{t0}, v{t1}")
    a(f"v_lshlrev_b32 v{t0}, 4, v{t0}")
    a(f"v_lshrrev_b32 v{t1}, 3, v{vlane}")
    a(f"v_lshl_add_u32 v{vdst}, v{t1}, {pitch_log2}, v{t0}")

def kn_frag_addr(a, vdst, vlane, snb, permuted, t0=1, t1=2, t2=3):
    a(f"v_bfe_u32 v{t0}, v{vlane}, 2, 2")
    a(f"v_lshrrev_b32 v{t1}, 5, v{vlane}")
    a(f"v_lshl_add_u32 v{t1}, v{t1}, {2 if permuted else 3}, v{t0}")
    a(f"v_lshlrev_b32 v{t1}, 7, v{t1}")
    a(f"v_lshrrev_b32 v{t0}, 1, v{t0}")
    a(f"v_xor_b32 v{t0}, s{snb}, v{t0}")
    a(f"v_lshl_add_u32 v{t1}, v{t0}, 6, v{t1}")
    a(f"v_bfe_u32 v{t0}, v{vlane}, 4, 1")
    a(f"v_lshl_add_u32 v{t1}, v{t0}, 5, v{t1}")
    a(f"v_and_b32 v{t0}, 3, v{vlane}")
    a(f"v_lshl_add_u32 v{vdst}, v{t0}, 3, v{t1}")

def xcd_tile(a, stm, stn, t0):
    a(f"s_and_b32 s{t0}, s2, 7")
    a(f"s_lshr_b32 s{t0+1}, s2, 3")
    a(f"s_lshr_b32 s{stm}, s{t0}, 1")
    a(f"s_lshl_b32 s{stm}, s{stm}, 2")
    a(f"s_lshr_b32 s{t0+2}, s{t0+1}, 3")
    a(f"s_add_u32 s{stm}, s{stm}, s{t0+2}")
    a(f"s_and_b32 s{stn}, s{t0}, 1")
    a(f"s_lshl_b32 s{stn}, s{stn}, 3")
    a(f"s_and_b32 s{t0+2}, s{t0+1}, 7")
    a(f"s_add_u32 s{stn}, s{stn}, s{t0+2}")

def pack16(a, dst, acc, scale_sgpr=None):
    if scale_sgpr is not None:
        for r in range(16):
            a(f"v_mul_f32 v{acc+r}, s{scale_sgpr}, v{acc+r}")
    for r in range(8):
        a(f"v_cvt_pk_bf16_f32 v{dst+r}, v{acc+2*r}, v{acc+2*r+1}")

def swap_natural(a, d):
    a("s_nop 1")
    a(f"v_permlane32_swap_b32 v{d}, v{d+2}")
    a(f"v_permlane32_swap_b32 v{d+1}, v{d+3}")
    a(f"v_permlane32_swap_b32 v{d+4}, v{d+6}")
    a(f"v_permlane32_swap_b32 v{d+5}, v{d+7}")
```

```python
from common import *
from gemm import *
from k_fnet import sdiv
import math

S1_BASE = 3 * 16384
S1_STG = 8192 + 12288
AT_LDS = S1_BASE + 5 * S1_STG
S1_UNITS = 216
BIAS = 90.0
THRESH = 2.0 ** 96
ABL = int(os.environ.get("ABL", "0"))

def gen_attn(a, name):
    kernel_begin(a, name)
    Lend = a.label("end")
    a(f"s_cmp_ge_u32 s2, 256")
    a(f"s_cbranch_scc1 {Lend}")
    stamp_begin(a)
    load_ptr(a, 14, "ws")
    a("s_load_dwordx4 s[4:7], s[0:1], 64")
    a("s_load_dwordx4 s[8:11], s[0:1], 48")
    load_ptr(a, 12, "wo")
    a("s_load_dwordx4 s[96:99], s[0:1], 0")
    S_W, S_RG, S_T = 42, 43, 64
    VL = 4
    lane_wave(a, VL, S_W)
    S_X, S_J = 65, 66
    a(f"s_and_b32 s{S_X}, s2, 7")
    a(f"s_lshr_b32 s{S_J}, s2, 3")
    S_TM, S_TN, S_MB, S_HD = 67, 68, 69, 70
    a(f"s_lshl_b32 s{S_TM}, s{S_X}, 1")
    a(f"s_lshr_b32 s{S_T}, s{S_J}, 4")
    a(f"s_add_u32 s{S_TM}, s{S_TM}, s{S_T}")
    a(f"s_and_b32 s{S_TN}, s{S_J}, 15")
    a(f"s_and_b32 s{S_MB}, s{S_W}, 3")
    a(f"s_bfe_u32 s{S_HD}, s{S_W}, 0x10002")
    a(f"s_lshl_b32 s{S_RG}, s{S_TM}, 2")
    a(f"s_add_u32 s{S_RG}, s{S_RG}, s{S_MB}")
    a(f"s_lshl_b32 s{S_RG}, s{S_RG}, 5")
    a(f"s_lshl_b32 s{S_T}, s{S_TN}, 1")
    a(f"s_add_u32 s{S_RG}, s{S_RG}, s{S_T}")
    a(f"s_add_u32 s{S_RG}, s{S_RG}, s{S_HD}")
    a(f"s_lshl_b32 s{S_RG}, s{S_RG}, 11")
    V16 = 5
    APREV, ACUR, ANEXT = 6, 7, 8
    VM, VLS = 9, 10
    Q = 12
    ONES = 20
    LT = 24
    KF = 28
    VF = 36
    P = [44, 52]
    CM = 64
    S = [80, 96]
    O = 112
    T = 128
    R = 144
    NV = 168
    a(f"v_lshlrev_b32 v{V16}, 4, v{VL}")
    S_LW, S_SRC, S_SLOT = 44, 45, 46
    a(f"s_lshl_b32 s{S_LW}, s{S_W}, 11")
    a("s_waitcnt lgkmcnt(0)")
    SWS, SKV, SD, SP = 32, 36, 16, 20
    make_srd(a, SWS, 14, WS_SIZE)
    make_srd(a, SKV, 14, 256 << 10, add=WS_KV)
    S_CLS, S_ST, S_ET = 50, 51, 52
    a(f"s_bfe_u32 s53, s{S_X}, 0x10001")
    a(f"s_lshl_b32 s{S_CLS}, s53, 2")
    a(f"s_lshr_b32 s53, s{S_X}, 2")
    a(f"s_lshl_b32 s53, s53, 1")
    a(f"s_add_u32 s{S_CLS}, s{S_CLS}, s53")
    a(f"s_and_b32 s53, s{S_X}, 1")
    a(f"s_add_u32 s{S_CLS}, s{S_CLS}, s53")
    sdiv(a, S_ST, S_J, 3, S_T)
    a(f"s_mul_i32 s54, s{S_ST}, 3")
    a(f"s_sub_u32 s{S_ET}, s{S_J}, s54")
    QST = 24576
    RS = [72, 73, 74, 75]; S_KK = 71
    pipe = Pipe(a, 4, QST, RS)
    SXX, SWQ = 24, 28
    VX, VW = 40, 44
    S_XB, S_WB, S_LX, S_LWQ = 58, 59, 60, 61
    groups = [
        Group(SXX, S_XB, 7, S_LX, [(VX + p, p * 1024) for p in range(4)]),
        Group(SWQ, S_WB, 17, S_LWQ, [(VW + p, 16384 + p * 1024) for p in range(2)]),
    ]
    QB, QA, QF, QACC = 128, 133, 64, 96
    qfrags = [
        Frag('b128', lambda u: (u, 0), [QF + 8*u for u in range(4)]),
        Frag('tr', lambda u: (4, 16384 + (16*u) * 128, 16384 + (16*u + 4) * 128), [QF + 4 + 8*u for u in range(4)]),
    ]
    qph = Phase(16, S_KK, groups, qfrags, [(QACC, 1, 0)], list(range(QB, QB + 5)), list(range(QA, QA + 5)))
    Lcomp = a.label("comp")
    a(f"s_cmp_lt_u32 s{S_W}, 8")
    a(f"s_cbranch_scc1 {Lcomp}")
    make_srd(a, SXX, 96, 4 << 20)
    make_srd(a, SWQ, 98, 2 << 20)
    for p in range(4):
        rm_voff(a, VX + p, VL, p & 1, pitch_log2=11)
        if p:
            a(f"v_add_u32 v{VX+p}, {p*8*2048}, v{VX+p}")
    kn_voff(a, VW, VL, 11)
    a(f"v_add_u32 v{VW+1}, {8*2048}, v{VW}")
    a(f"s_lshl_b32 s{S_XB}, s{S_TM}, 18")
    a(f"s_lshl_b32 s{S_T}, s{S_MB}, 16")
    a(f"s_add_u32 s{S_XB}, s{S_XB}, s{S_T}")
    a(f"s_lshl_b32 s{S_WB}, s{S_TN}, 7")
    a(f"s_lshl_b32 s{S_T}, s{S_MB}, 15")
    a(f"s_add_u32 s{S_WB}, s{S_WB}, s{S_T}")
    a(f"s_lshl_b32 s{S_LX}, s{S_MB}, 12")
    a(f"s_add_u32 s{S_LX}, s{S_LX}, {S1_BASE}")
    a(f"s_lshl_b32 s{S_LWQ}, s{S_MB}, 11")
    a(f"s_add_u32 s{S_LWQ}, s{S_LWQ}, {S1_BASE}")
    if os.environ.get("KROT"):
        a(f"s_lshr_b32 s{S_KK}, s{S_J}, 4")
        a(f"s_lshl_b32 s{S_KK}, s{S_KK}, 3")
        if os.environ.get("KROT") == "2":
            a(f"s_add_u32 s{S_KK}, s{S_KK}, s{S_J}")
            a(f"s_and_b32 s{S_KK}, s{S_KK}, 15")
    else:
        a(f"s_mov_b32 s{S_KK}, 0")
    pipe.loader_prologue(qph)
    pipe.loader_first(qph)
    pipe.loader_loop(qph, 12, 6)
    pipe.loader_tail(6)
    a(f"s_cmp_lg_u32 s{S_W}, 8")
    a(f"s_cbranch_scc1 {Lend}")
    a(f"s_cmp_lt_u32 s{S_CLS}, 4")
    a(f"s_cselect_b32 s{SD}, s4, s6")
    a(f"s_cselect_b32 s{SD+1}, s5, s7")
    a(f"s_mov_b32 s{SD+2}, {2<<20}")
    a(f"s_mov_b32 s{SD+3}, 0x20000")
    for par in range(2):
        rm_voff(a, 12 + par, VL, par, pitch=F_PITCH)
        rm_voff(a, 14 + par, VL, par, pitch_log2=12)
    a(f"s_mul_i32 s54, s{S_CLS}, {F_CLS}")
    a(f"s_mul_i32 s55, s{S_ST}, {64*F_PITCH}")
    a(f"s_add_u32 s54, s54, s55")
    a(f"s_add_u32 s54, s54, {WS_F}")
    a(f"s_mul_i32 s55, s{S_ET}, {96*4096}")
    a(f"s_and_b32 s56, s{S_CLS}, 1")
    a(f"s_lshl_b32 s56, s56, 11")
    a(f"s_add_u32 s55, s55, s56")
    a(f"s_cmp_ge_u32 s{S_J}, 27")
    a(f"s_cselect_b32 s54, 0x40000000, s54")
    a(f"s_cselect_b32 s55, 0x40000000, s55")
    a(f"s_mov_b32 s56, {S1_BASE}")
    a(f"s_mov_b32 s{S_SRC}, {2*16384}")
    a(f"s_mov_b32 s{S_SLOT}, {2*16384}")
    a("s_barrier")
    def refill():
        for pp in range(16):
            a(f"s_add_u32 m0, s{S_SLOT}, {pp*1024}")
            a(f"s_add_u32 s{S_T}, s{S_SRC}, {pp*1024}")
            a(f"buffer_load_dwordx4 v{V16}, s[{SKV}:{SKV+3}], s{S_T} offen lds")
        a(f"s_add_u32 s{S_SRC}, s{S_SRC}, 16384")
        a(f"s_add_u32 s{S_SLOT}, s{S_SLOT}, 16384")
        a(f"s_cmp_eq_u32 s{S_SLOT}, {3*16384}")
        a(f"s_cselect_b32 s{S_SLOT}, 0, s{S_SLOT}")
    a(f"s_mov_b32 s47, 0")
    L1 = a.label("ld1")
    a(f"{L1}:")
    a("s_waitcnt vmcnt(20)" if not (ABL & 128) else "s_waitcnt vmcnt(0)")
    a("s_barrier")
    refill()
    for p in range(8):
        a(f"s_add_u32 m0, s56, {p*1024}")
        a(f"s_add_u32 s{S_T}, s54, {p*8*F_PITCH}")
        if not (ABL & 128): a(f"buffer_load_dwordx4 v{12+(p&1)}, s[{SWS}:{SWS+3}], s{S_T} offen lds")
    for p in range(12):
        a(f"s_add_u32 m0, s56, {8192+p*1024}")
        a(f"s_add_u32 s{S_T}, s55, {p*8*4096}")
        if not (ABL & 128): a(f"buffer_load_dwordx4 v{14+(p&1)}, s[{SD}:{SD+3}], s{S_T} offen lds")
    a(f"s_add_u32 s54, s54, 128")
    a(f"s_add_u32 s55, s55, 128")
    a(f"s_add_u32 s56, s56, {S1_STG}")
    a(f"s_add_u32 s47, s47, 1")
    a(f"s_cmp_lt_u32 s47, 5")
    a(f"s_cbranch_scc1 {L1}")
    make_srd(a, SP, 12, 2 << 20)
    a(f"s_lshl_b32 s53, s{S_J}, 16")
    a(f"v_lshlrev_b32 v20, 6, v{VL}")
    a(f"s_bfe_u32 s57, s{S_X}, 0x10001")
    a(f"s_mul_i32 s57, s57, 320")
    a(f"s_mul_i32 s54, s{S_J}, 10")
    a(f"s_add_u32 s57, s57, s54")
    a(f"s_lshl_b32 s57, s57, 13")
    a(f"s_lshr_b32 s54, s{S_X}, 2")
    a(f"s_lshl_b32 s54, s54, 12")
    a(f"s_add_u32 s57, s57, s54")
    a(f"s_mov_b32 s54, {hex((1<<32)//18+1)}")
    for h in range(3):
        a(f"v_add_u32 v1, {64*h}, v{VL}")
        a(f"v_min_u32 v1, 179, v1")
        a(f"v_mul_hi_u32 v2, v1, s54")
        a(f"v_mul_u32_u24 v3, 18, v2")
        a(f"v_sub_u32 v1, v1, v3")
        a(f"v_lshlrev_b32 v1, 6, v1")
        a(f"v_lshl_add_u32 v{16+h}, v2, 13, v1")
    a("s_waitcnt vmcnt(20)")
    L2 = a.label("ld2")
    a(f"{L2}:")
    a("s_barrier")
    refill()
    a(f"buffer_load_dword v21, v20, s[{SP}:{SP+3}], s53 offen")
    a(f"s_add_u32 s53, s53, 4096")
    a(f"buffer_load_dword v22, v20, s[{SP}:{SP+3}], s53 offen")
    a(f"s_add_u32 s53, s53, 4096")
    a(f"s_add_u32 s47, s47, 1")
    a(f"s_cmp_lt_u32 s47, 13")
    a("s_waitcnt vmcnt(2)")
    a(f"s_cbranch_scc1 {L2}")
    SP2 = 24
    make_srd(a, SP, 8, 8 << 20)
    make_srd(a, SP2, 10, 8 << 20)
    for h in range(3):
        a("s_barrier")
        if h == 0: refill()
        a(f"buffer_load_dword v21, v{16+h}, s[{SP}:{SP+3}], s57 offen")
        a(f"buffer_load_dword v22, v{16+h}, s[{SP2}:{SP2+3}], s57 offen")
        if h == 0: a("s_waitcnt vmcnt(2)")
    a(f"s_branch {Lend}")
    a(f"{Lcomp}:")
    for c in range(2):
        for p in range(2):
            a(f"s_add_u32 m0, s{S_LW}, {c*16384 + p*1024}")
            a(f"s_add_u32 s{S_T}, s{S_LW}, {c*16384 + p*1024}")
            a(f"buffer_load_dwordx4 v{V16}, s[{SKV}:{SKV+3}], s{S_T} offen lds")
    rm_frag_addr(a, 6, VL)
    a(f"s_lshl_b32 s{S_T}, s{S_MB}, 12")
    a(f"s_add_u32 s{S_T}, s{S_T}, {S1_BASE}")
    a(f"v_add_u32 v6, s{S_T}, v6")
    for u in range(4):
        a(f"v_xor_b32 v{QB+u}, {u*32}, v6")
    kn_frag_addr(a, QB + 4, VL, S_HD, False)
    a(f"v_add_u32 v{QB+4}, {S1_BASE}, v{QB+4}")
    pipe.compute(qph, True)
    mark(a, 3)
    cq = (32 ** -0.5) * math.log2(math.e)
    a(f"s_mov_b32 s{S_T}, {hex(f32bits(cq))}")
    a("s_nop 9")
    pack16(a, Q, QACC, S_T)
    a(f"v_add_u32 v{APREV}, {2*16384}, v{V16}")
    a(f"v_mov_b32 v{ACUR}, v{V16}")
    a(f"v_add_u32 v{ANEXT}, 16384, v{V16}")
    a(f"v_mov_b32 v{VLS}, 0")
    for r in range(16):
        a(f"v_mov_b32 v{O+r}, 0")
    for r in range(8):
        a(f"v_mov_b32 v{P[1]+r}, 0")
        a(f"v_mov_b32 v{VF+r}, 0")
    for r in range(4):
        a(f"v_mov_b32 v{LT+r}, 0")
    a(f"v_bfe_u32 v1, v{VL}, 4, 1")
    a(f"v_bfe_u32 v2, v{VL}, 2, 1")
    a(f"v_cmp_eq_u32 vcc, v1, v2")
    a(f"v_mov_b32 v1, 0x3f803f80")
    a("s_nop 1")
    for r in range(4):
        a(f"v_cndmask_b32 v{ONES+r}, 0, v1, vcc")
    S_TH = 48
    a(f"s_mov_b32 s{S_TH}, {hex(f32bits(THRESH))}")
    a("s_waitcnt vmcnt(0)")
    a("s_barrier")
    a(f"ds_read_b128 {vr(KF,4)}, v{ACUR}")
    a(f"ds_read_b128 {vr(KF+4,4)}, v{ACUR} offset:1024")
    a("s_waitcnt lgkmcnt(0)")
    a(mfma32(S[0], KF, Q, "0"))
    a(mfma32(S[0], KF+4, Q+4))
    a(f"ds_read_b128 {vr(KF,4)}, v{ACUR} offset:4096")
    a(f"ds_read_b128 {vr(KF+4,4)}, v{ACUR} offset:{4096+1024}")
    S_C = 47
    a(f"s_mov_b32 s{S_C}, 0")
    a("s_nop 11")
    def rowmax(X):
        a(f"v_max3_f32 v1, v{X}, v{X+1}, v{X+2}")
        for r in range(3, 15, 2):
            a(f"v_max3_f32 v1, v1, v{X+r}, v{X+r+1}")
        a(f"v_max_f32 v1, v1, v{X+15}")
        a(f"v_mov_b32 v2, v1")
        a("s_nop 1")
        a(f"v_permlane32_swap_b32 v1, v2")
        a("s_nop 1")
        a(f"v_max_f32 v1, v1, v2")
        a(f"v_add_f32 v1, {hex(f32bits(BIAS))}, v1")
    rowmax(S[0])
    a(f"v_mov_b32 v{VM}, v1")
    a(f"v_sub_f32 v3, 0, v1")
    for r in range(16):
        a(f"v_mov_b32 v{CM+r}, v3")
        a(f"v_sub_f32 v{S[0]+r}, v{S[0]+r}, v1")
    if TIMING:
        a("s_mov_b32 s83, 0")
    a("s_waitcnt lgkmcnt(0)")
    Lloop = a.label("loop")
    slow = []
    def kaddr(j):
        if j < 0: return APREV, (4 + j) * 4096
        if j < 4: return ACUR, j * 4096
        return ANEXT, (j - 4) * 4096
    def tile(j, final=False):
        p = j & 1
        Sc, Sn, Pc, Pp = S[p], S[1-p], P[p], P[1-p]
        e = lambda r: a(f"v_exp_f32 v{Sc+r}, v{Sc+r}")
        c = lambda r: a(f"v_cvt_pk_bf16_f32 v{Pc+r}, v{Sc+2*r}, v{Sc+2*r+1}")
        pre = []
        def pe(r): pre.append(f"v_exp_f32 v{Sc+r}, v{Sc+r}"); e(r)
        def pc(r): pre.append(f"v_cvt_pk_bf16_f32 v{Pc+r}, v{Sc+2*r}, v{Sc+2*r+1}"); c(r)
        if j == 2 and not final:
            a("s_waitcnt vmcnt(0)")
            a("s_barrier")
        if not (ABL & 64): a(f"s_setprio {3 - ((j + 2) & 3)}")
        Ls, Lr = a.label("slow"), a.label("ret")
        if final:
            a("s_waitcnt lgkmcnt(0)")
            a("s_nop 1")
            a(mfma16(LT, ONES, Pp+4))
            a("s_nop 7")
            a(f"v_cmp_nge_f32 vcc, s{S_TH}, v{LT}")
            a(f"s_cbranch_vccnz {Ls}")
            a(f"{Lr}:")
            slow.append((Ls, Lr, j, pre, final))
            a(mfma32(O, VF, Pp))
            a(f"v_add_f32 v{VLS}, v{VLS}, v{LT}")
            a(mfma32(O, VF+4, Pp+4))
            return
        a("s_waitcnt lgkmcnt(2)")
        a(mfma32(Sn, KF, Q, CM))
        pe(0); pe(1); pe(2)
        a(mfma16(LT, ONES, Pp+4))
        pe(3); pc(0); pe(4)
        a(mfma32(Sn, KF+4, Q+4))
        pe(5); pc(1); pe(6); pe(7)
        a(f"v_cmp_nge_f32 vcc, s{S_TH}, v{LT}")
        v, off = kaddr(j + 2)
        a(f"ds_read_b128 {vr(KF,4)}, v{v} offset:{off}")
        pc(2)
        a(f"ds_read_b128 {vr(KF+4,4)}, v{v} offset:{off+1024}")
        a("s_waitcnt lgkmcnt(2)")
        a(f"s_cbranch_vccnz {Ls}")
        a(f"{Lr}:")
        slow.append((Ls, Lr, j, pre, final))
        a(mfma32(O, VF, Pp))
        a(f"v_add_f32 v{VLS}, v{VLS}, v{LT}")
        e(8); e(9); c(3); e(10)
        a(mfma32(O, VF+4, Pp+4))
        e(11); c(4); e(12); e(13)
        a(mfma16(LT, ONES, Pc, "0"))
        a(f"ds_read_b128 {vr(VF,4)}, v{ACUR} offset:{j*4096+2048}")
        c(5)
        a(f"ds_read_b128 {vr(VF+4,4)}, v{ACUR} offset:{j*4096+3072}")
        e(14); e(15); c(6); c(7)
    a(f"{Lloop}:")
    for j in range(4):
        tile(j)
    a(f"v_mov_b32 v1, v{APREV}")
    a(f"v_mov_b32 v{APREV}, v{ACUR}")
    a(f"v_mov_b32 v{ACUR}, v{ANEXT}")
    a(f"v_mov_b32 v{ANEXT}, v1")
    a(f"s_add_u32 s{S_C}, s{S_C}, 1")
    a(f"s_cmp_lt_u32 s{S_C}, 16")
    a(f"s_cbranch_scc1 {Lloop}")
    tile(0, final=True)
    mark(a, 1)
    a(f"v_rcp_f32 v1, v{VLS}")
    a("s_nop 11")
    for r in range(16):
        a(f"v_mul_f32 v{O+r}, v{O+r}, v1")
    pack16(a, T, O)
    a(f"s_add_u32 s{S_T}, s{S_RG}, {WS_O}")
    a(f"buffer_store_dwordx4 {vr(T,4)}, v{V16}, s[{SWS}:{SWS+3}], s{S_T} offen")
    a(f"buffer_store_dwordx4 {vr(T+4,4)}, v{V16}, s[{SWS}:{SWS+3}], s{S_T} offen offset:1024")
    mark(a, 2)
    Lfin = a.label("fin")
    a(f"s_cmp_ge_u32 s{S_J}, 27")
    a(f"s_cbranch_scc1 {Lfin}")
    a(f"s_cmp_ge_u32 s{S_W}, 6")
    a(f"s_cbranch_scc1 {Lfin}")
    a(f"s_cmp_ge_u32 s{S_W}, 3")
    a(f"s_cselect_b32 s53, 1, 0")
    a(f"s_mul_i32 s54, s53, 3")
    a(f"s_sub_u32 s54, s{S_W}, s54")
    rm_frag_addr(a, 6, VL)
    a(f"s_lshl_b32 s55, s53, 12")
    a(f"s_add_u32 s55, s55, {S1_BASE}")
    a(f"s_lshl_b32 s56, s54, 12")
    a(f"s_add_u32 s56, s56, {S1_BASE + 8192}")
    VA = 12
    for u in range(4):
        a(f"v_xor_b32 v7, {u*32}, v6")
        a(f"v_add_u32 v{VA+u}, s55, v7")
        a(f"v_add_u32 v{VA+4+u}, s56, v7")
    FA = 28
    ACC = S[0]
    for k in range(5):
        off = k * S1_STG
        if off + 0 >= 65536:
            for i in range(8): a(f"v_add_u32 v{VA+i}, 0x10000, v{VA+i}")
            off -= 65536
        for u in range(4):
            a(f"ds_read_b128 {vr(FA+8*u,4)}, v{VA+u} offset:{off}")
            a(f"ds_read_b128 {vr(FA+8*u+4,4)}, v{VA+4+u} offset:{off}")
        for u in range(4):
            a(f"s_waitcnt lgkmcnt({6-2*u})")
            a(mfma32(ACC, FA+8*u, FA+8*u+4, "0" if (k == 0 and u == 0) else None))
    a(f"s_mul_i32 s55, s{S_CLS}, {G_CLS}")
    a(f"s_mul_i32 s56, s{S_ET}, 3")
    a(f"s_add_u32 s56, s56, s54")
    a(f"s_mul_i32 s56, s56, {G_EB}")
    a(f"s_add_u32 s55, s55, s56")
    a(f"s_lshl_b32 s56, s{S_ST}, 1")
    a(f"s_add_u32 s56, s56, s53")
    a(f"s_lshl_b32 s56, s56, 11")
    a(f"s_add_u32 s55, s55, s56")
    a(f"s_add_u32 s55, s55, {WS_G}")
    a("s_nop 3")
    pack16(a, R, ACC)
    swap_natural(a, R)
    a(f"buffer_store_dwordx4 {vr(R,4)}, v{V16}, s[{SWS}:{SWS+3}], s55 offen")
    a(f"buffer_store_dwordx4 {vr(R+4,4)}, v{V16}, s[{SWS}:{SWS+3}], s55 offen offset:1024")
    a(f"{Lfin}:")
    stamp_end(a)
    dump_marks(a)
    a(f"{Lend}:")
    a("s_endpgm")
    for (Ls, Lr, j, pre, final) in slow:
        p = j & 1
        Sc, Sn, Pc, Pp = S[p], S[1-p], P[p], P[1-p]
        a(f"{Ls}:")
        if TIMING: a("s_add_u32 s83, s83, 1")
        def rdk(jj):
            v, off = kaddr(jj)
            a(f"ds_read_b128 {vr(T,4)}, v{v} offset:{off}")
            a(f"ds_read_b128 {vr(T+4,4)}, v{v} offset:{off+1024}")
            a("s_waitcnt lgkmcnt(0)")
        rdk(j - 1)
        a(mfma32(R, T, Q, "0"))
        a(mfma32(R, T+4, Q+4))
        a("s_nop 15")
        rowmax(R)
        a(f"v_max_f32 v1, v1, v{VM}")
        a(f"v_sub_f32 v2, v{VM}, v1")
        a(f"v_mul_f32 v2, 0.5, v2")
        a(f"v_exp_f32 v2, v2")
        a(f"v_mov_b32 v{VM}, v1")
        a(f"v_sub_f32 v3, 0, v1")
        for r in range(16):
            a(f"v_mul_f32 v{O+r}, v{O+r}, v2")
            a(f"v_mov_b32 v{CM+r}, v3")
            a(f"v_mul_f32 v{O+r}, v{O+r}, v2")
            a(f"v_sub_f32 v{R+r}, v{R+r}, v1")
        a(f"v_mul_f32 v{VLS}, v{VLS}, v2")
        a(f"v_mul_f32 v{VLS}, v{VLS}, v2")
        for r in range(16):
            a(f"v_exp_f32 v{R+r}, v{R+r}")
        a("s_nop 0")
        for r in range(8):
            a(f"v_cvt_pk_bf16_f32 v{Pp+r}, v{R+2*r}, v{R+2*r+1}")
        a("s_nop 1")
        a(mfma16(LT, ONES, Pp, "0"))
        a(mfma16(LT, ONES, Pp+4))
        if not final:
            rdk(j)
            a(mfma32(Sc, T, Q, CM))
            a(mfma32(Sc, T+4, Q+4))
            a("s_nop 7")
            rdk(j + 1)
            a(mfma32(Sn, T, Q, CM))
            a(mfma32(Sn, T+4, Q+4))
        a("s_nop 15")
        for s in pre:
            a("s_nop 0")
            a(s)
        a("s_nop 1")
        a(f"s_branch {Lr}")
    kernel_end(a, name, NV, sgpr=102)
```

```python
from common import *
from gemm import *
from k_fnet import sdiv
import math

S1_BASE = 3 * 16384
S1_STG = 8192 + 12288
AT_LDS = S1_BASE + 5 * S1_STG
S1_UNITS = 216
BIAS = 90.0
THRESH = 2.0 ** 96
ABL = int(os.environ.get("ABL", "0"))

def gen_attn(a, name):
    kernel_begin(a, name)
    Lend = a.label("end")
    a(f"s_cmp_ge_u32 s2, 256")
    a(f"s_cbranch_scc1 {Lend}")
    stamp_begin(a)
    load_ptr(a, 14, "ws")
    a("s_load_dwordx4 s[4:7], s[0:1], 64")
    a("s_load_dwordx4 s[8:11], s[0:1], 48")
    load_ptr(a, 12, "wo")
    a("s_load_dwordx4 s[96:99], s[0:1], 0")
    S_W, S_RG, S_T = 42, 43, 64
    VL = 4
    lane_wave(a, VL, S_W)
    S_X, S_J = 65, 66
    a(f"s_and_b32 s{S_X}, s2, 7")
    a(f"s_lshr_b32 s{S_J}, s2, 3")
    S_TM, S_TN, S_MB, S_HD = 67, 68, 69, 70
    a(f"s_lshl_b32 s{S_TM}, s{S_X}, 1")
    a(f"s_lshr_b32 s{S_T}, s{S_J}, 4")
    a(f"s_add_u32 s{S_TM}, s{S_TM}, s{S_T}")
    a(f"s_and_b32 s{S_TN}, s{S_J}, 15")
    a(f"s_and_b32 s{S_MB}, s{S_W}, 3")
    a(f"s_bfe_u32 s{S_HD}, s{S_W}, 0x10002")
    a(f"s_lshl_b32 s{S_RG}, s{S_TM}, 2")
    a(f"s_add_u32 s{S_RG}, s{S_RG}, s{S_MB}")
    a(f"s_lshl_b32 s{S_RG}, s{S_RG}, 5")
    a(f"s_lshl_b32 s{S_T}, s{S_TN}, 1")
    a(f"s_add_u32 s{S_RG}, s{S_RG}, s{S_T}")
    a(f"s_add_u32 s{S_RG}, s{S_RG}, s{S_HD}")
    a(f"s_lshl_b32 s{S_RG}, s{S_RG}, 11")
    V16 = 5
    APREV, ACUR, ANEXT = 6, 7, 8
    VM, VLS = 9, 10
    Q = 12
    ONES = 20
    LT = 24
    KF = 28
    VF = 36
    P = [44, 52]
    CM = 64
    S = [80, 96]
    O = 112
    T = 128
    R = 144
    NV = 168
    a(f"v_lshlrev_b32 v{V16}, 4, v{VL}")
    S_LW, S_SRC, S_SLOT = 44, 45, 46
    a(f"s_lshl_b32 s{S_LW}, s{S_W}, 11")
    a("s_waitcnt lgkmcnt(0)")
    SWS, SKV, SD, SP = 32, 36, 16, 20
    make_srd(a, SWS, 14, WS_SIZE)
    make_srd(a, SKV, 14, 256 << 10, add=WS_KV)
    S_CLS, S_ST, S_ET = 50, 51, 52
    a(f"s_bfe_u32 s53, s{S_X}, 0x10001")
    a(f"s_lshl_b32 s{S_CLS}, s53, 2")
    a(f"s_lshr_b32 s53, s{S_X}, 2")
    a(f"s_lshl_b32 s53, s53, 1")
    a(f"s_add_u32 s{S_CLS}, s{S_CLS}, s53")
    a(f"s_and_b32 s53, s{S_X}, 1")
    a(f"s_add_u32 s{S_CLS}, s{S_CLS}, s53")
    sdiv(a, S_ST, S_J, 3, S_T)
    a(f"s_mul_i32 s54, s{S_ST}, 3")
    a(f"s_sub_u32 s{S_ET}, s{S_J}, s54")
    QST = 24576
    RS = [72, 73, 74, 75]; S_KK = 71
    pipe = Pipe(a, 4, QST, RS)
    SXX, SWQ = 24, 28
    VX, VW = 40, 44
    S_XB, S_WB, S_LX, S_LWQ = 58, 59, 60, 61
    groups = [
        Group(SXX, S_XB, 7, S_LX, [(VX + p, p * 1024) for p in range(4)]),
        Group(SWQ, S_WB, 17, S_LWQ, [(VW + p, 16384 + p * 1024) for p in range(2)]),
    ]
    QB, QA, QF, QACC = 128, 133, 64, 96
    qfrags = [
        Frag('b128', lambda u: (u, 0), [QF + 8*u for u in range(4)]),
        Frag('tr', lambda u: (4, 16384 + (16*u) * 128, 16384 + (16*u + 4) * 128), [QF + 4 + 8*u for u in range(4)]),
    ]
    qph = Phase(16, S_KK, groups, qfrags, [(QACC, 1, 0)], list(range(QB, QB + 5)), list(range(QA, QA + 5)))
    Lcomp = a.label("comp")
    a(f"s_cmp_lt_u32 s{S_W}, 8")
    a(f"s_cbranch_scc1 {Lcomp}")
    a(f"s_cmp_lt_u32 s{S_CLS}, 4")
    a(f"s_cselect_b32 s{SD}, s4, s6")
    a(f"s_cselect_b32 s{SD+1}, s5, s7")
    a(f"s_mov_b32 s{SD+2}, {2<<20}")
    a(f"s_mov_b32 s{SD+3}, 0x20000")
    for par in range(2):
        rm_voff(a, 12 + par, VL, par, pitch=F_PITCH)
        rm_voff(a, 14 + par, VL, par, pitch_log2=12)
    a(f"s_mul_i32 s54, s{S_CLS}, {F_CLS}")
    a(f"s_mul_i32 s55, s{S_ST}, {64*F_PITCH}")
    a(f"s_add_u32 s54, s54, s55")
    a(f"s_add_u32 s54, s54, {WS_F}")
    a(f"s_mul_i32 s55, s{S_ET}, {96*4096}")
    a(f"s_and_b32 s56, s{S_CLS}, 1")
    a(f"s_lshl_b32 s56, s56, 11")
    a(f"s_add_u32 s55, s55, s56")
    a(f"s_cmp_ge_u32 s{S_J}, 27")
    a(f"s_cselect_b32 s54, 0x40000000, s54")
    a(f"s_cselect_b32 s55, 0x40000000, s55")
    a(f"s_mov_b32 s56, {S1_BASE}")
    a(f"s_mov_b32 s{S_SRC}, {2*16384}")
    a(f"s_mov_b32 s{S_SLOT}, {2*16384}")
    a("s_barrier")
    def refill():
        for pp in range(16):
            a(f"s_add_u32 m0, s{S_SLOT}, {pp*1024}")
            a(f"s_add_u32 s{S_T}, s{S_SRC}, {pp*1024}")
            a(f"buffer_load_dwordx4 v{V16}, s[{SKV}:{SKV+3}], s{S_T} offen lds")
        a(f"s_add_u32 s{S_SRC}, s{S_SRC}, 16384")
        a(f"s_add_u32 s{S_SLOT}, s{S_SLOT}, 16384")
        a(f"s_cmp_eq_u32 s{S_SLOT}, {3*16384}")
        a(f"s_cselect_b32 s{S_SLOT}, 0, s{S_SLOT}")
    a(f"s_mov_b32 s47, 0")
    L1 = a.label("ld1")
    a(f"{L1}:")
    a("s_waitcnt vmcnt(20)" if not (ABL & 128) else "s_waitcnt vmcnt(0)")
    a("s_barrier")
    refill()
    for p in range(8):
        a(f"s_add_u32 m0, s56, {p*1024}")
        a(f"s_add_u32 s{S_T}, s54, {p*8*F_PITCH}")
        if not (ABL & 128): a(f"buffer_load_dwordx4 v{12+(p&1)}, s[{SWS}:{SWS+3}], s{S_T} offen lds")
    for p in range(12):
        a(f"s_add_u32 m0, s56, {8192+p*1024}")
        a(f"s_add_u32 s{S_T}, s55, {p*8*4096}")
        if not (ABL & 128): a(f"buffer_load_dwordx4 v{14+(p&1)}, s[{SD}:{SD+3}], s{S_T} offen lds")
    a(f"s_add_u32 s54, s54, 128")
    a(f"s_add_u32 s55, s55, 128")
    a(f"s_add_u32 s56, s56, {S1_STG}")
    a(f"s_add_u32 s47, s47, 1")
    a(f"s_cmp_lt_u32 s47, 5")
    a(f"s_cbranch_scc1 {L1}")
    make_srd(a, SP, 12, 2 << 20)
    a(f"s_lshl_b32 s53, s{S_J}, 16")
    a(f"v_lshlrev_b32 v20, 6, v{VL}")
    a(f"s_bfe_u32 s57, s{S_X}, 0x10001")
    a(f"s_mul_i32 s57, s57, 320")
    a(f"s_mul_i32 s54, s{S_J}, 10")
    a(f"s_add_u32 s57, s57, s54")
    a(f"s_lshl_b32 s57, s57, 13")
    a(f"s_lshr_b32 s54, s{S_X}, 2")
    a(f"s_lshl_b32 s54, s54, 12")
    a(f"s_add_u32 s57, s57, s54")
    a(f"s_mov_b32 s54, {hex((1<<32)//18+1)}")
    for h in range(3):
        a(f"v_add_u32 v1, {64*h}, v{VL}")
        a(f"v_min_u32 v1, 179, v1")
        a(f"v_mul_hi_u32 v2, v1, s54")
        a(f"v_mul_u32_u24 v3, 18, v2")
        a(f"v_sub_u32 v1, v1, v3")
        a(f"v_lshlrev_b32 v1, 6, v1")
        a(f"v_lshl_add_u32 v{16+h}, v2, 13, v1")
    a("s_waitcnt vmcnt(20)")
    L2 = a.label("ld2")
    a(f"{L2}:")
    a("s_barrier")
    refill()
    a(f"buffer_load_dword v21, v20, s[{SP}:{SP+3}], s53 offen")
    a(f"s_add_u32 s53, s53, 4096")
    a(f"buffer_load_dword v22, v20, s[{SP}:{SP+3}], s53 offen")
    a(f"s_add_u32 s53, s53, 4096")
    a(f"s_add_u32 s47, s47, 1")
    a(f"s_cmp_lt_u32 s47, 13")
    a("s_waitcnt vmcnt(2)")
    a(f"s_cbranch_scc1 {L2}")
    SP2 = 24
    make_srd(a, SP, 8, 8 << 20)
    make_srd(a, SP2, 10, 8 << 20)
    for h in range(3):
        a("s_barrier")
        if h == 0: refill()
        a(f"buffer_load_dword v21, v{16+h}, s[{SP}:{SP+3}], s57 offen")
        a(f"buffer_load_dword v22, v{16+h}, s[{SP2}:{SP2+3}], s57 offen")
        if h == 0: a("s_waitcnt vmcnt(2)")
    a(f"s_branch {Lend}")
    a(f"{Lcomp}:")
    a(f"s_add_u32 s{S_T}, s{S_RG}, {WS_Q}")
    a(f"buffer_load_dwordx4 {vr(Q,4)}, v{V16}, s[{SWS}:{SWS+3}], s{S_T} offen")
    a(f"buffer_load_dwordx4 {vr(Q+4,4)}, v{V16}, s[{SWS}:{SWS+3}], s{S_T} offen offset:1024")
    for c in range(2):
        for p in range(2):
            a(f"s_add_u32 m0, s{S_LW}, {c*16384 + p*1024}")
            a(f"s_add_u32 s{S_T}, s{S_LW}, {c*16384 + p*1024}")
            a(f"buffer_load_dwordx4 v{V16}, s[{SKV}:{SKV+3}], s{S_T} offen lds")
    a(f"v_add_u32 v{APREV}, {2*16384}, v{V16}")
    a(f"v_mov_b32 v{ACUR}, v{V16}")
    a(f"v_add_u32 v{ANEXT}, 16384, v{V16}")
    a(f"v_mov_b32 v{VLS}, 0")
    for r in range(16):
        a(f"v_mov_b32 v{O+r}, 0")
    for r in range(8):
        a(f"v_mov_b32 v{P[1]+r}, 0")
        a(f"v_mov_b32 v{VF+r}, 0")
    for r in range(4):
        a(f"v_mov_b32 v{LT+r}, 0")
    a(f"v_bfe_u32 v1, v{VL}, 4, 1")
    a(f"v_bfe_u32 v2, v{VL}, 2, 1")
    a(f"v_cmp_eq_u32 vcc, v1, v2")
    a(f"v_mov_b32 v1, 0x3f803f80")
    a("s_nop 1")
    for r in range(4):
        a(f"v_cndmask_b32 v{ONES+r}, 0, v1, vcc")
    S_TH = 48
    a(f"s_mov_b32 s{S_TH}, {hex(f32bits(THRESH))}")
    a("s_waitcnt vmcnt(2)")
    a("s_barrier")
    mark(a, 3)
    a(f"ds_read_b128 {vr(KF,4)}, v{ACUR}")
    a(f"ds_read_b128 {vr(KF+4,4)}, v{ACUR} offset:1024")
    a("s_waitcnt lgkmcnt(0)")
    a(mfma32(S[0], KF, Q, "0"))
    a(mfma32(S[0], KF+4, Q+4))
    a(f"ds_read_b128 {vr(KF,4)}, v{ACUR} offset:4096")
    a(f"ds_read_b128 {vr(KF+4,4)}, v{ACUR} offset:{4096+1024}")
    S_C = 47
    a(f"s_mov_b32 s{S_C}, 0")
    a("s_nop 11")
    def rowmax(X):
        a(f"v_max3_f32 v1, v{X}, v{X+1}, v{X+2}")
        for r in range(3, 15, 2):
            a(f"v_max3_f32 v1, v1, v{X+r}, v{X+r+1}")
        a(f"v_max_f32 v1, v1, v{X+15}")
        a(f"v_mov_b32 v2, v1")
        a("s_nop 1")
        a(f"v_permlane32_swap_b32 v1, v2")
        a("s_nop 1")
        a(f"v_max_f32 v1, v1, v2")
        a(f"v_add_f32 v1, {hex(f32bits(BIAS))}, v1")
    rowmax(S[0])
    a(f"v_mov_b32 v{VM}, v1")
    a(f"v_sub_f32 v3, 0, v1")
    for r in range(16):
        a(f"v_mov_b32 v{CM+r}, v3")
        a(f"v_sub_f32 v{S[0]+r}, v{S[0]+r}, v1")
    if TIMING:
        a("s_mov_b32 s83, 0")
    a("s_waitcnt lgkmcnt(0)")
    Lloop = a.label("loop")
    slow = []
    def kaddr(j):
        if j < 0: return APREV, (4 + j) * 4096
        if j < 4: return ACUR, j * 4096
        return ANEXT, (j - 4) * 4096
    def tile(j, final=False):
        p = j & 1
        Sc, Sn, Pc, Pp = S[p], S[1-p], P[p], P[1-p]
        e = lambda r: a(f"v_exp_f32 v{Sc+r}, v{Sc+r}")
        c = lambda r: a(f"v_cvt_pk_bf16_f32 v{Pc+r}, v{Sc+2*r}, v{Sc+2*r+1}")
        pre = []
        def pe(r): pre.append(f"v_exp_f32 v{Sc+r}, v{Sc+r}"); e(r)
        def pc(r): pre.append(f"v_cvt_pk_bf16_f32 v{Pc+r}, v{Sc+2*r}, v{Sc+2*r+1}"); c(r)
        if j == 2 and not final:
            a("s_waitcnt vmcnt(0)")
            a("s_barrier")
        if not (ABL & 64): a(f"s_setprio {3 - ((j + 2) & 3)}")
        Ls, Lr = a.label("slow"), a.label("ret")
        if final:
            a("s_waitcnt lgkmcnt(0)")
            a("s_nop 1")
            a(mfma16(LT, ONES, Pp+4))
            a("s_nop 7")
            a(f"v_cmp_nge_f32 vcc, s{S_TH}, v{LT}")
            a(f"s_cbranch_vccnz {Ls}")
            a(f"{Lr}:")
            slow.append((Ls, Lr, j, pre, final))
            a(mfma32(O, VF, Pp))
            a(f"v_add_f32 v{VLS}, v{VLS}, v{LT}")
            a(mfma32(O, VF+4, Pp+4))
            return
        a("s_waitcnt lgkmcnt(2)")
        a(mfma32(Sn, KF, Q, CM))
        pe(0); pe(1); pe(2)
        a(mfma16(LT, ONES, Pp+4))
        pe(3); pc(0); pe(4)
        a(mfma32(Sn, KF+4, Q+4))
        pe(5); pc(1); pe(6); pe(7)
        a(f"v_cmp_nge_f32 vcc, s{S_TH}, v{LT}")
        v, off = kaddr(j + 2)
        a(f"ds_read_b128 {vr(KF,4)}, v{v} offset:{off}")
        pc(2)
        a(f"ds_read_b128 {vr(KF+4,4)}, v{v} offset:{off+1024}")
        a("s_waitcnt lgkmcnt(2)")
        a(f"s_cbranch_vccnz {Ls}")
        a(f"{Lr}:")
        slow.append((Ls, Lr, j, pre, final))
        a(mfma32(O, VF, Pp))
        a(f"v_add_f32 v{VLS}, v{VLS}, v{LT}")
        e(8); e(9); c(3); e(10)
        a(mfma32(O, VF+4, Pp+4))
        e(11); c(4); e(12); e(13)
        a(mfma16(LT, ONES, Pc, "0"))
        a(f"ds_read_b128 {vr(VF,4)}, v{ACUR} offset:{j*4096+2048}")
        c(5)
        a(f"ds_read_b128 {vr(VF+4,4)}, v{ACUR} offset:{j*4096+3072}")
        e(14); e(15); c(6); c(7)
    a(f"{Lloop}:")
    for j in range(4):
        tile(j)
    a(f"v_mov_b32 v1, v{APREV}")
    a(f"v_mov_b32 v{APREV}, v{ACUR}")
    a(f"v_mov_b32 v{ACUR}, v{ANEXT}")
    a(f"v_mov_b32 v{ANEXT}, v1")
    a(f"s_add_u32 s{S_C}, s{S_C}, 1")
    a(f"s_cmp_lt_u32 s{S_C}, 16")
    a(f"s_cbranch_scc1 {Lloop}")
    tile(0, final=True)
    mark(a, 1)
    a(f"v_rcp_f32 v1, v{VLS}")
    a("s_nop 11")
    for r in range(16):
        a(f"v_mul_f32 v{O+r}, v{O+r}, v1")
    pack16(a, T, O)
    a(f"s_add_u32 s{S_T}, s{S_RG}, {WS_O}")
    a(f"buffer_store_dwordx4 {vr(T,4)}, v{V16}, s[{SWS}:{SWS+3}], s{S_T} offen")
    a(f"buffer_store_dwordx4 {vr(T+4,4)}, v{V16}, s[{SWS}:{SWS+3}], s{S_T} offen offset:1024")
    mark(a, 2)
    Lfin = a.label("fin")
    a(f"s_cmp_ge_u32 s{S_J}, 27")
    a(f"s_cbranch_scc1 {Lfin}")
    a(f"s_cmp_ge_u32 s{S_W}, 6")
    a(f"s_cbranch_scc1 {Lfin}")
    a(f"s_cmp_ge_u32 s{S_W}, 3")
    a(f"s_cselect_b32 s53, 1, 0")
    a(f"s_mul_i32 s54, s53, 3")
    a(f"s_sub_u32 s54, s{S_W}, s54")
    rm_frag_addr(a, 6, VL)
    a(f"s_lshl_b32 s55, s53, 12")
    a(f"s_add_u32 s55, s55, {S1_BASE}")
    a(f"s_lshl_b32 s56, s54, 12")
    a(f"s_add_u32 s56, s56, {S1_BASE + 8192}")
    VA = 12
    for u in range(4):
        a(f"v_xor_b32 v7, {u*32}, v6")
        a(f"v_add_u32 v{VA+u}, s55, v7")
        a(f"v_add_u32 v{VA+4+u}, s56, v7")
    FA = 28
    ACC = S[0]
    for k in range(5):
        off = k * S1_STG
        if off + 0 >= 65536:
            for i in range(8): a(f"v_add_u32 v{VA+i}, 0x10000, v{VA+i}")
            off -= 65536
        for u in range(4):
            a(f"ds_read_b128 {vr(FA+8*u,4)}, v{VA+u} offset:{off}")
            a(f"ds_read_b128 {vr(FA+8*u+4,4)}, v{VA+4+u} offset:{off}")
        for u in range(4):
            a(f"s_waitcnt lgkmcnt({6-2*u})")
            a(mfma32(ACC, FA+8*u, FA+8*u+4, "0" if (k == 0 and u == 0) else None))
    a(f"s_mul_i32 s55, s{S_CLS}, {G_CLS}")
    a(f"s_mul_i32 s56, s{S_ET}, 3")
    a(f"s_add_u32 s56, s56, s54")
    a(f"s_mul_i32 s56, s56, {G_EB}")
    a(f"s_add_u32 s55, s55, s56")
    a(f"s_lshl_b32 s56, s{S_ST}, 1")
    a(f"s_add_u32 s56, s56, s53")
    a(f"s_lshl_b32 s56, s56, 11")
    a(f"s_add_u32 s55, s55, s56")
    a(f"s_add_u32 s55, s55, {WS_G}")
    a("s_nop 3")
    pack16(a, R, ACC)
    swap_natural(a, R)
    a(f"buffer_store_dwordx4 {vr(R,4)}, v{V16}, s[{SWS}:{SWS+3}], s55 offen")
    a(f"buffer_store_dwordx4 {vr(R+4,4)}, v{V16}, s[{SWS}:{SWS+3}], s55 offen offset:1024")
    a(f"{Lfin}:")
    stamp_end(a)
    dump_marks(a)
    a(f"{Lend}:")
    a("s_endpgm")
    for (Ls, Lr, j, pre, final) in slow:
        p = j & 1
        Sc, Sn, Pc, Pp = S[p], S[1-p], P[p], P[1-p]
        a(f"{Ls}:")
        if TIMING: a("s_add_u32 s83, s83, 1")
        def rdk(jj):
            v, off = kaddr(jj)
            a(f"ds_read_b128 {vr(T,4)}, v{v} offset:{off}")
            a(f"ds_read_b128 {vr(T+4,4)}, v{v} offset:{off+1024}")
            a("s_waitcnt lgkmcnt(0)")
        rdk(j - 1)
        a(mfma32(R, T, Q, "0"))
        a(mfma32(R, T+4, Q+4))
        a("s_nop 15")
        rowmax(R)
        a(f"v_max_f32 v1, v1, v{VM}")
        a(f"v_sub_f32 v2, v{VM}, v1")
        a(f"v_mul_f32 v2, 0.5, v2")
        a(f"v_exp_f32 v2, v2")
        a(f"v_mov_b32 v{VM}, v1")
        a(f"v_sub_f32 v3, 0, v1")
        for r in range(16):
            a(f"v_mul_f32 v{O+r}, v{O+r}, v2")
            a(f"v_mov_b32 v{CM+r}, v3")
            a(f"v_mul_f32 v{O+r}, v{O+r}, v2")
            a(f"v_sub_f32 v{R+r}, v{R+r}, v1")
        a(f"v_mul_f32 v{VLS}, v{VLS}, v2")
        a(f"v_mul_f32 v{VLS}, v{VLS}, v2")
        for r in range(16):
            a(f"v_exp_f32 v{R+r}, v{R+r}")
        a("s_nop 0")
        for r in range(8):
            a(f"v_cvt_pk_bf16_f32 v{Pp+r}, v{R+2*r}, v{R+2*r+1}")
        a("s_nop 1")
        a(mfma16(LT, ONES, Pp, "0"))
        a(mfma16(LT, ONES, Pp+4))
        if not final:
            rdk(j)
            a(mfma32(Sc, T, Q, CM))
            a(mfma32(Sc, T+4, Q+4))
            a("s_nop 7")
            rdk(j + 1)
            a(mfma32(Sn, T, Q, CM))
            a(mfma32(Sn, T+4, Q+4))
        a("s_nop 15")
        for s in pre:
            a("s_nop 0")
            a(s)
        a("s_nop 1")
        a(f"s_branch {Lr}")
    kernel_end(a, name, NV, sgpr=102)
```

```python
from common import *
from gemm import *
from k_fnet import sdiv
import math

S1_BASE = 3 * 16384
S1_STG = 8192 + 12288
AT_LDS = 163840
FLAG_STEP = int(os.environ.get('FLAG_STEP', '2'))
FOLD_STEP = [int(x) for x in os.environ.get('FOLD_STEP', '8,11').split(',')]
FORCE_FB = int(os.environ.get('FORCE_FB', '0'))
SPIN_LIMIT = 2 if FORCE_FB else 4096
DW = 163840 - 16
NUNITS_X = F_ROWS * 5 // 8
S1_UNITS = 216
BIAS = 90.0
THRESH = 2.0 ** 96
ABL = int(os.environ.get("ABL", "256"))

VF, VFO, VFW, VFP = 64, 128, 152, 136
EX = 16
S_U = 44
SBX = 20
SC = 'sc0 sc1'
def pre_part(a, VL, V16, S_W, S_X, S_J, S_T, SWS, lead=True):
    SXX, SE, SB = 16, 20, 24
    S_LB, S_KB = 40, 41
    XF, WF, ACC = 64, 80, 112
    if lead:
        a(f"s_add_u32 s3, s2, s{S_W}")
        a(f"s_cmp_eq_u32 s3, 0")
        a(f"s_cselect_b32 s30, -1, 0")
        a(f"s_mov_b32 s31, 0")
        for r in range(4): a(f"v_mov_b32 v{60+r}, 0")
        a(f"v_lshlrev_b32 v1, 7, v{VL}")
        a(f"s_mov_b64 exec, s[30:31]")
        a(f"buffer_store_dwordx4 v[60:63], v1, s[{SWS}:{SWS+3}], 0 offen {SC}")
        a(f"s_mov_b64 exec, -1")
    make_srd(a, SXX, 96, 4 << 20)
    a(f"s_bitcmp1_b32 s{S_J}, 0")
    a(f"s_cselect_b32 s{SE}, s58, s56")
    a(f"s_cselect_b32 s{SE+1}, s59, s57")
    a(f"s_mov_b32 s{SE+2}, 65536")
    a(f"s_mov_b32 s{SE+3}, 0x20000")
    a(f"s_lshl_b32 s45, s{S_W}, 13")
    a(f"s_cmp_ge_u32 s{S_W}, 6")
    a(f"s_cselect_b32 s{S_LB}, {96*1024}, 0")
    a(f"s_add_u32 s{S_LB}, s{S_LB}, s45")
    if lead and os.environ.get("KVD"): a(f"s_sleep {os.environ.get('KVD')}")
    for p in range(8):
        a(f"s_add_u32 m0, s{S_LB}, {p*1024}")
        a(f"s_add_u32 s{S_T}, s45, {p*1024}")
        a(f"buffer_load_dwordx4 v{V16}, s[{SE}:{SE+3}], s{S_T} offen lds")
    a(f"s_lshl_b32 s46, s{S_X}, 4")
    a(f"s_lshr_b32 s{S_T}, s{S_J}, 1")
    a(f"s_add_u32 s46, s46, s{S_T}")
    a(f"s_lshl_b32 s45, s46, 15")
    a(f"s_lshl_b32 s{S_T}, s{S_W}, 8")
    a(f"s_add_u32 s45, s45, s{S_T}")
    a(f"v_and_b32 v1, 15, v{VL}")
    a(f"v_lshrrev_b32 v2, 4, v{VL}")
    a(f"v_lshlrev_b32 v3, 4, v2")
    a(f"v_lshl_add_u32 v3, v1, 11, v3")
    for ks in range(4):
        a(f"buffer_load_dwordx4 {vr(XF+4*ks,4)}, v3, s[{SXX}:{SXX+3}], s45 offen offset:{ks*64}")
    a(f"v_and_b32 v3, 1, v2")
    a(f"v_lshl_add_u32 v3, v3, 5, v1")
    a(f"v_lshlrev_b32 v3, 4, v3")
    a(f"v_lshrrev_b32 v8, 1, v2")
    a(f"v_lshl_add_u32 v8, v8, 3, v3")
    a(f"v_bfe_u32 v1, v{VL}, 2, 2")
    a(f"v_lshl_add_u32 v1, v2, 3, v1")
    a(f"v_lshlrev_b32 v1, 6, v1")
    a(f"v_and_b32 v2, 3, v{VL}")
    a(f"v_lshl_add_u32 v1, v2, 3, v1")
    a(f"v_add_u32 v9, s{S_LB}, v1")
    a(f"s_lshr_b32 s{S_KB}, s46, 1")
    a(f"s_lshl_b32 s{S_KB}, s{S_KB}, 12")
    a(f"s_add_u32 s{S_KB}, s{S_KB}, {WS_KV}")
    a(f"s_and_b32 s46, s46, 1")
    a(f"s_bitcmp1_b32 s{S_J}, 0")
    a(f"s_cselect_b32 s45, 10, 8")
    a(f"s_cselect_b32 s49, 1, 4")
    a(f"s_cselect_b32 s{S_T}, 2048, 0")
    a(f"s_add_u32 s{S_KB}, s{S_KB}, s{S_T}")
    a(f"s_lshl_b32 s46, s46, s45")
    a(f"s_add_u32 s{S_KB}, s{S_KB}, s46")
    a(f"s_lshl_b32 s49, s49, 8")
    a(f"s_add_u32 s49, s49, s{S_KB}")
    if lead:
        make_srd(a, SB, 98, 2 << 20)
        a(f"v_lshrrev_b32 v1, 1, v{VL}")
        a(f"v_and_b32 v2, 1, v{VL}")
        a(f"v_lshlrev_b32 v2, 6, v2")
        a(f"v_lshl_add_u32 v10, v1, 11, v2")
        a(f"s_lshr_b32 s53, s{S_J}, 4")
        a(f"s_lshl_b32 s53, s53, 3")
        a(f"s_add_u32 s53, s53, s{S_J}")
        a(f"s_add_u32 s53, s53, 4")
        a(f"s_lshl_b32 s53, s53, 1")
        a(f"s_add_u32 s53, s53, s{S_W}")
        a(f"s_and_b32 s53, s53, 31")
        a(f"s_lshl_b32 s53, s53, 16")
        a(f"s_and_b32 s54, s{S_J}, 15")
        a(f"s_lshl_b32 s54, s54, 7")
        a(f"s_add_u32 s53, s53, s54")
    a("s_waitcnt vmcnt(2)" if not (ABL & 256) else "s_waitcnt vmcnt(0)")
    if lead:
        if not os.environ.get("NOTOUCH"):
            a(f"buffer_load_dword v56, v10, s[{SB}:{SB+3}], s53 offen")
        a(f"s_and_b32 s30, s30, 1")
        a(f"v_mov_b32 v1, 0")
        a(f"v_mov_b32 v2, 1")
        a(f"s_mov_b64 exec, s[30:31]")
        a(f"global_store_dword v1, v2, s[62:63] {SC}")
        a(f"s_mov_b64 exec, -1")
    for ks in range(4):
        for c in range(2):
            r = WF + 8*ks + 4*c
            a(f"ds_read_b64_tr_b16 {vr(r,2)}, v9 offset:{ks*2048 + c*32}")
            a(f"ds_read_b64_tr_b16 {vr(r+2,2)}, v9 offset:{ks*2048 + c*32 + 256}")
        if ks == 1: a("s_waitcnt lgkmcnt(4)")
    Lv, Lj, Lnr = a.label("kvv"), a.label("kvj"), a.label("kvn")
    a("s_waitcnt lgkmcnt(0)")
    a(f"s_bitcmp1_b32 s{S_J}, 0")
    a(f"s_cbranch_scc1 {Lv}")
    for ks in range(4):
        for c in range(2):
            a(mfma16(ACC+4*c, WF+8*ks+4*c, XF+4*ks, "0" if ks == 0 else None))
    a(f"s_branch {Lj}")
    a(f"{Lv}:")
    for ks in range(4):
        for c in range(2):
            a(mfma16(ACC+4*c, XF+4*ks, WF+8*ks+4*c, "0" if ks == 0 else None))
    a(f"{Lj}:")
    a(f"v_add_u32 v9, s{S_LB}, v{V16}")
    a("s_nop 15")
    for c in range(2):
        a(f"ds_write_b128 v9, {vr(ACC+4*c,4)} offset:{c*1024}")
    a("s_waitcnt lgkmcnt(0)")
    a("s_barrier")
    a(f"s_cmp_lt_u32 s{S_W}, 7")
    a(f"s_cbranch_scc1 {Lnr}")
    a(f"v_add_u32 v10, {144*1024}, v{V16}")
    for c in range(2):
        B = 64 + 32*c
        for w in range(8):
            if w < 6: a(f"ds_read_b128 {vr(B+4*w,4)}, v{V16} offset:{w*8192 + c*1024}")
            else: a(f"ds_read_b128 {vr(B+4*w,4)}, v10 offset:{(w-6)*8192 + c*1024}")
        for w in range(1, 8):
            a(f"s_waitcnt lgkmcnt({7-w})")
            for r in range(4):
                a(f"v_add_f32 v{B+r}, v{B+r}, v{B+4*w+r}")
        a(f"v_cvt_pk_bf16_f32 v{58+2*c}, v{B}, v{B+1}")
        a(f"v_cvt_pk_bf16_f32 v{59+2*c}, v{B+2}, v{B+3}")
        a(f"buffer_store_dwordx2 {vr(58+2*c,2)}, v8, s[{SWS}:{SWS+3}], s{49 if c else S_KB} offen {SC}")
    a(f"{Lnr}:")

def fold_loads(a, j, VL):
    SB = SBX
    RW = 72
    su = S_U + j
    for r in range(16):
        a(f"v_mov_b32 v{VF+16*j+r}, 0")
    a(f"s_mov_b32 s53, {hex((1<<32)//5+1)}")
    a(f"s_mul_hi_u32 s54, s{su}, s53")
    a(f"s_mul_i32 s53, s54, 5")
    a(f"s_sub_u32 s53, s{su}, s53")
    a(f"s_lshl_b32 s53, s53, 6")
    a(f"v_add_u32 v10, s53, v{VL}")
    a(f"s_mul_i32 s{su}, s54, {F_PITCH}")
    a(f"s_add_u32 s{su}, s{su}, {WS_F}")
    a(f"s_mov_b32 s55, 1.0")
    a(f"s_and_b32 s53, s54, 511")
    a(f"s_cmp_eq_u32 s53, 0")
    a(f"s_cselect_b32 s55, 0.5, s55")
    a(f"s_cmp_gt_u32 s54, 512")
    a(f"s_cselect_b32 s55, 0, s55")
    a(f"s_cselect_b32 s54, 0, s54")
    a(f"s_lshl_b32 s{RW}, s54, 11")
    a(f"s_sub_u32 s{RW+1}, 2048, s54")
    a(f"s_and_b32 s{RW+1}, s{RW+1}, 2047")
    a(f"s_lshl_b32 s{RW+1}, s{RW+1}, 11")
    a(f"s_sub_u32 s{RW+2}, 1024, s54")
    a(f"s_lshl_b32 s{RW+2}, s{RW+2}, 11")
    a(f"s_add_u32 s{RW+3}, 1024, s54")
    a(f"s_lshl_b32 s{RW+3}, s{RW+3}, 11")
    a(f"v_lshlrev_b32 v{VFO+j}, 1, v10")
    a(f"v_sub_u32 v6, 2048, v{VFO+j}")
    a(f"v_and_b32 v6, 2047, v6")
    a(f"v_sub_u32 v7, 1024, v{VFO+j}")
    if j == 3: a(f"s_mov_b64 exec, s[{EX}:{EX+1}]")
    for r in range(4):
        b = VF + 16*j + 4*r
        a(f"buffer_load_short_d16_hi v{b}, v{VFO+j}, s[{SB}:{SB+3}], s{RW+r} offen")
        a(f"buffer_load_short_d16_hi v{b+2}, v6, s[{SB}:{SB+3}], s{RW+r} offen")
        a(f"buffer_load_short_d16_hi v{b+1}, v7, s[{SB}:{SB+3}], s{RW+r} offen")
        a(f"buffer_load_short_d16_hi v{b+3}, v{VFO+j}, s[{SB}:{SB+3}], s{RW+r} offen offset:1024")
    if j == 3: a(f"s_mov_b64 exec, -1")
    a(f"v_mov_b32 v{VFW+2*j}, s55")
    a(f"v_and_b32 v1, 255, v10")
    a(f"v_cmp_eq_u32 vcc, 0, v1")
    a(f"v_mul_f32 v1, 0.5, v{VFW+2*j}")
    a("s_nop 1")
    a(f"v_cndmask_b32 v{VFW+2*j}, v{VFW+2*j}, v1, vcc")
    a(f"v_cmp_lt_u32 vcc, 256, v10")
    a("s_nop 1")
    a(f"v_cndmask_b32 v{VFW+2*j}, v{VFW+2*j}, 0, vcc")

def fold_compute(a, j, SWS):
    if True:
        if j == 3: a(f"s_mov_b64 exec, s[{EX}:{EX+1}]")
        b = VF + 16*j
        X = lambda r, h: vr(b + 4*r + h, 2)
        NEG = "neg_lo:[0,1] neg_hi:[0,1]"
        for h in (0, 2):
            a(f"v_pk_add_f32 v[2:3], {X(0,h)}, {X(1,h)}")
            a(f"v_pk_add_f32 v[6:7], {X(0,h)}, {X(1,h)} {NEG}")
            a(f"v_pk_add_f32 v[8:9], {X(2,h)}, {X(3,h)}")
            a(f"v_pk_add_f32 v[10:11], {X(2,h)}, {X(3,h)} {NEG}")
            a(f"v_pk_add_f32 {X(0,h)}, v[2:3], v[8:9]")
            a(f"v_pk_add_f32 {X(1,h)}, v[2:3], v[8:9] {NEG}")
            a(f"v_pk_add_f32 {X(2,h)}, v[6:7], v[10:11] {NEG}")
            a(f"v_pk_add_f32 {X(3,h)}, v[6:7], v[10:11]")
        for r in range(4):
            a(f"v_pk_add_f32 v[2:3], {X(r,0)}, {X(r,2)} {'' if r < 2 else NEG}")
            a(f"v_pk_add_f32 v[6:7], v[2:3], v[2:3] op_sel:[0,1] op_sel_hi:[0,1] {'neg_hi:[0,1]' if r < 2 else 'neg_lo:[0,1]'}")
            a(f"v_pk_mul_f32 v[6:7], v[6:7], {vr(VFW+2*j,2)} op_sel_hi:[1,0]")
            a(f"v_cvt_pk_bf16_f32 v{VFP+4*j+r}, v6, v7")
            a(f"s_add_u32 s53, s{S_U+j}, {(2*r)*F_CLS}")
            a(f"s_add_u32 s54, s{S_U+j}, {(2*r+1)*F_CLS}")
            a(f"buffer_store_short v{VFP+4*j+r}, v{VFO+j}, s[{SWS}:{SWS+3}], s53 offen {SC}")
            a(f"buffer_store_short_d16_hi v{VFP+4*j+r}, v{VFO+j}, s[{SWS}:{SWS+3}], s54 offen {SC}")

def gen_attn(a, name):
    kernel_begin(a, name)
    Lend = a.label("end")
    a(f"s_cmp_ge_u32 s2, 256")
    a(f"s_cbranch_scc1 {Lend}")
    stamp_begin(a)
    load_ptr(a, 14, "ws")
    a("s_load_dwordx4 s[4:7], s[0:1], 64")
    a("s_load_dwordx4 s[8:11], s[0:1], 48")
    load_ptr(a, 12, "wo")
    a("s_load_dwordx4 s[96:99], s[0:1], 0")
    a("s_load_dwordx4 s[56:59], s[0:1], 16")
    load_ptr(a, 100, "B_x")
    load_ptr(a, 62, "dbg")
    S_W, S_RG, S_T = 42, 43, 64
    VL = 4
    lane_wave(a, VL, S_W)
    S_X, S_J = 65, 66
    a(f"s_and_b32 s{S_X}, s2, 7")
    a(f"s_lshr_b32 s{S_J}, s2, 3")
    S_TM, S_TN, S_MB, S_HD = 67, 68, 69, 70
    a(f"s_lshl_b32 s{S_TM}, s{S_X}, 1")
    a(f"s_lshr_b32 s{S_T}, s{S_J}, 4")
    a(f"s_add_u32 s{S_TM}, s{S_TM}, s{S_T}")
    a(f"s_and_b32 s{S_TN}, s{S_J}, 15")
    a(f"s_and_b32 s{S_MB}, s{S_W}, 3")
    a(f"s_bfe_u32 s{S_HD}, s{S_W}, 0x10002")
    a(f"s_lshl_b32 s{S_RG}, s{S_TM}, 2")
    a(f"s_add_u32 s{S_RG}, s{S_RG}, s{S_MB}")
    a(f"s_lshl_b32 s{S_RG}, s{S_RG}, 5")
    a(f"s_lshl_b32 s{S_T}, s{S_TN}, 1")
    a(f"s_add_u32 s{S_RG}, s{S_RG}, s{S_T}")
    a(f"s_add_u32 s{S_RG}, s{S_RG}, s{S_HD}")
    a(f"s_lshl_b32 s{S_RG}, s{S_RG}, 11")
    V16 = 5
    APREV, ACUR, ANEXT = 6, 7, 8
    VM, VLS = 9, 10
    Q = 12
    ONES = 20
    LT = 24
    KF = 28
    VF = 36
    P = [44, 52]
    CM = 64
    S = [80, 96]
    O = 112
    T = 128
    R = 144
    NV = 168
    a(f"v_lshlrev_b32 v{V16}, 4, v{VL}")
    S_LW, S_SRC, S_SLOT = 44, 45, 46
    a(f"s_lshl_b32 s{S_LW}, s{S_W}, 11")
    a("s_waitcnt lgkmcnt(0)")
    SWS, SKV, SD, SP = 32, 36, 16, 20
    make_srd(a, SWS, 14, WS_SIZE)
    make_srd(a, SKV, 14, 256 << 10, add=WS_KV)
    S_CLS, S_ST, S_ET = 50, 51, 52
    a(f"s_bfe_u32 s53, s{S_X}, 0x10001")
    a(f"s_lshl_b32 s{S_CLS}, s53, 2")
    a(f"s_lshr_b32 s53, s{S_X}, 2")
    a(f"s_lshl_b32 s53, s53, 1")
    a(f"s_add_u32 s{S_CLS}, s{S_CLS}, s53")
    a(f"s_and_b32 s53, s{S_X}, 1")
    a(f"s_add_u32 s{S_CLS}, s{S_CLS}, s53")
    sdiv(a, S_ST, S_J, 3, S_T)
    a(f"s_mul_i32 s54, s{S_ST}, 3")
    a(f"s_sub_u32 s{S_ET}, s{S_J}, s54")
    QST = 24576
    RS = [72, 73, 74, 75]; S_KK = 71
    pipe = Pipe(a, 4, QST, RS)
    SXX, SWQ = 24, 28
    VX, VW = 40, 44
    S_XB, S_WB, S_LX, S_LWQ = 58, 59, 60, 61
    groups = [
        Group(SXX, S_XB, 7, S_LX, [(VX + p, p * 1024) for p in range(4)]),
        Group(SWQ, S_WB, 17, S_LWQ, [(VW + p, 16384 + p * 1024) for p in range(2)]),
    ]
    QB, QA, QF, QACC = 128, 133, 64, 96
    qfrags = [
        Frag('b128', lambda u: (u, 0), [QF + 8*u for u in range(4)]),
        Frag('tr', lambda u: (4, 16384 + (16*u) * 128, 16384 + (16*u + 4) * 128), [QF + 4 + 8*u for u in range(4)]),
    ]
    qph = Phase(16, S_KK, groups, qfrags, [(QACC, 1, 0)], list(range(QB, QB + 5)), list(range(QA, QA + 5)))
    def ann(v):
        a(f"v_mov_b32 v{v+1}, 0")
        a(f"global_load_dword v{v}, v{v+1}, s[62:63] sc0 sc1")
    def flag(ph):
        a("s_and_b32 s3, s2, 15")
        a("s_lshl_b32 s3, s3, 7")
        a(f"s_lshr_b32 s{S_T}, s2, 4")
        a(f"s_add_u32 s3, s3, s{S_T}")
        a("v_mov_b32 v1, s3")
        a("v_mov_b32 v2, 1")
        a("s_mov_b64 exec, 1")
        a(f"buffer_store_byte v2, v1, s[{SWS}:{SWS+3}], 0 offen offset:{ph*2048} sc0 sc1")
        a("s_mov_b64 exec, -1")
    def setdw(val):
        a(f"v_mov_b32 v1, {DW}")
        a(f"v_mov_b32 v2, {val}")
        a(f"ds_write_b32 v1, v2")
        a("s_waitcnt lgkmcnt(0)")
    def fb_bars():
        L = a.label("fbb")
        a("s_barrier")
        a(f"s_mov_b32 s49, 0")
        a(f"{L}:")
        a("s_barrier")
        a("s_barrier")
        a(f"s_add_u32 s49, s49, 1")
        a(f"s_cmp_lt_u32 s49, 256")
        a(f"s_cbranch_scc1 {L}")
        a("s_barrier")
    Lcomp = a.label("comp")
    a(f"s_cmp_lt_u32 s{S_W}, 8")
    a(f"s_cbranch_scc1 {Lcomp}")
    make_srd(a, SXX, 96, 4 << 20)
    make_srd(a, SWQ, 98, 2 << 20)
    for p in range(4):
        rm_voff(a, VX + p, VL, p & 1, pitch_log2=11)
        if p:
            a(f"v_add_u32 v{VX+p}, {p*8*2048}, v{VX+p}")
    kn_voff(a, VW, VL, 11)
    a(f"v_add_u32 v{VW+1}, {8*2048}, v{VW}")
    a(f"s_lshl_b32 s{S_XB}, s{S_TM}, 18")
    a(f"s_lshl_b32 s{S_T}, s{S_MB}, 16")
    a(f"s_add_u32 s{S_XB}, s{S_XB}, s{S_T}")
    a(f"s_lshl_b32 s{S_WB}, s{S_TN}, 7")
    a(f"s_lshl_b32 s{S_T}, s{S_MB}, 15")
    a(f"s_add_u32 s{S_WB}, s{S_WB}, s{S_T}")
    a(f"s_lshl_b32 s{S_LX}, s{S_MB}, 12")
    a(f"s_add_u32 s{S_LX}, s{S_LX}, {S1_BASE}")
    a(f"s_lshl_b32 s{S_LWQ}, s{S_MB}, 11")
    a(f"s_add_u32 s{S_LWQ}, s{S_LWQ}, {S1_BASE}")
    a(f"s_lshr_b32 s{S_KK}, s{S_J}, 4")
    a(f"s_lshl_b32 s{S_KK}, s{S_KK}, 3")
    a(f"s_add_u32 s{S_KK}, s{S_KK}, s{S_J}")
    a(f"s_and_b32 s{S_KK}, s{S_KK}, 15")
    if ABL & 512: a(f"s_mov_b32 s{S_KK}, 0")
    a(f"s_mov_b32 s{pipe.S_SL}, 0")
    LDR = int(os.environ.get("LDR", "4"))
    for _ in range(LDR): pipe.issue(qph)
    if LDR == 2:
        a("s_waitcnt vmcnt(6)")
        for _ in range(2): pipe.issue(qph)
    if LDR == 3:
        a("s_waitcnt vmcnt(12)")
        pipe.issue(qph)
    a("s_barrier")
    a("s_waitcnt vmcnt(18)")
    a("s_barrier")
    a("s_waitcnt vmcnt(12)")
    a("s_barrier")
    pipe.loader_loop(qph, 6, 6)
    Lw8 = a.label("w8")
    a(f"s_cmp_eq_u32 s{S_W}, 8")
    a(f"s_cbranch_scc1 {Lw8}")
    pipe.loader_loop(qph, 6, 6)
    pipe.loader_tail(6)
    make_srd(a, SBX, 100, 4 << 20)
    a(f"s_sub_u32 s53, s{S_W}, 9")
    a(f"s_lshl_b32 s53, s53, 5")
    a(f"s_add_u32 s53, s53, s{S_J}")
    a(f"s_cmp_lt_u32 s53, {NUNITS_X - 288}")
    a(f"s_cselect_b64 s[{EX}:{EX+1}], -1, 0")
    a(f"s_mul_i32 s{S_U}, s{S_X}, {NUNITS_X}")
    a(f"s_add_u32 s{S_U}, s{S_U}, s53")
    for i in range(1, 4):
        a(f"s_add_u32 s{S_U+i}, s{S_U}, {96*i}")
    Lb0, Lb1 = a.label("b0"), a.label("b1")
    a(f"{Lb0}:")
    a("s_barrier")
    a(f"v_mov_b32 v1, {DW}")
    a(f"ds_read_b32 v2, v1")
    a("s_waitcnt lgkmcnt(0)")
    a("v_readfirstlane_b32 s3, v2")
    a("s_cmp_eq_u32 s3, 0")
    a(f"s_cbranch_scc1 {Lb1}")
    fb_bars()
    a(f"s_branch {Lb0}")
    a(f"{Lb1}:")
    wv = {2: 32, 3: 40, 4: 32, 5: 16}
    for it in range(6):
        if it < 4: fold_loads(a, it, VL)
        if it >= 2:
            a(f"s_waitcnt vmcnt({wv[it]})")
            fold_compute(a, it - 2, SWS)
        if it == 5:
            a("s_mov_b64 exec, -1")
            ann(56)
            a("s_barrier")
            a("s_waitcnt vmcnt(0)")
        a("s_barrier")
    a(f"s_cmp_lg_u32 s{S_W}, 9")
    a(f"s_cbranch_scc1 {Lend}")
    a("v_readfirstlane_b32 s3, v56")
    a("s_cmp_lg_u32 s3, 1")
    a(f"s_cbranch_scc1 {Lend}")
    flag(1)
    a(f"s_branch {Lend}")
    a(f"{Lw8}:")
    a(f"v_lshrrev_b32 v31, 2, v{VL}")
    a(f"v_and_b32 v30, 3, v{VL}")
    a(f"v_lshlrev_b32 v30, 2, v30")
    a(f"v_lshl_add_u32 v31, v31, 7, v30")
    def poll(ph):
        a(f"buffer_load_dword v30, v31, s[{SWS}:{SWS+3}], 0 offen offset:{ph*2048} sc0 sc1")
    def check():
        a(f"v_mul_lo_u32 v30, v30, v28")
        a(f"v_cmp_eq_u32 vcc, 0x01010101, v30")
        a("s_nop 3")
        a(f"s_cmp_eq_u64 vcc, -1")
        if FORCE_FB: a("s_cmp_eq_u32 s2, 0x7777")
    a("s_waitcnt vmcnt(6)")
    a("s_barrier")
    pipe.issue(qph)
    ann(28)
    for _ in range(2):
        a("s_waitcnt vmcnt(7)")
        a("s_barrier")
        pipe.issue(qph)
    def kv01(lo=0, hi=32):
        for pp in range(lo, hi):
            a(f"s_mov_b32 m0, {pp*1024}")
            a(f"s_add_u32 s{S_T}, s53, {pp*1024}")
            a(f"buffer_load_dwordx4 v{V16}, s[{SKV}:{SKV+3}], s{S_T} offen lds")
    a("s_waitcnt vmcnt(6)")
    a("s_barrier")
    pipe.issue(qph)
    poll(0)
    a("s_waitcnt vmcnt(7)")
    a("s_barrier")
    pipe.issue(qph)
    a("s_waitcnt vmcnt(7)")
    a("s_barrier")
    pipe.issue(qph)
    a("s_waitcnt vmcnt(12)")
    check()
    a(f"s_cselect_b32 s53, 0, 0x40000000")
    kv01(0, 16)
    a("s_waitcnt vmcnt(22)")
    a("s_barrier")
    kv01(16, 32)
    a("s_waitcnt vmcnt(32)")
    a("s_barrier")
    Lok, Lpl, Lgo = a.label("fok"), a.label("fpl"), a.label("fgo")
    a(f"s_cmp_eq_u32 s53, 0")
    a(f"s_cbranch_scc1 {Lok}")
    def spin(m):
        Lp, Lg = a.label("spl"), a.label("spg")
        a(f"s_mov_b32 s49, 0")
        a(f"s_mov_b32 s48, 0")
        a(f"{Lp}:")
        ann(28)
        a("s_waitcnt vmcnt(0)")
        poll(m)
        a(f"s_add_u32 s49, s49, 1")
        a("s_waitcnt vmcnt(0)")
        check()
        a(f"s_cbranch_scc1 {Lg}")
        a("s_sleep 4")
        a(f"s_cmp_lt_u32 s49, {SPIN_LIMIT}")
        a(f"s_cbranch_scc1 {Lp}")
        a(f"s_mov_b32 s48, 1")
        a(f"{Lg}:")
    spin(0)
    a(f"s_cmp_eq_u32 s48, 0")
    a(f"s_cbranch_scc1 {Lgo}")
    setdw(1)
    a("s_barrier")
    fb_bars()
    a(f"{Lgo}:")
    a(f"s_mov_b32 s53, 0")
    kv01()
    a(f"{Lok}:")
    setdw(0)
    a(f"s_cmp_lt_u32 s{S_CLS}, 4")
    a(f"s_cselect_b32 s{SD}, s4, s6")
    a(f"s_cselect_b32 s{SD+1}, s5, s7")
    a(f"s_mov_b32 s{SD+2}, {2<<20}")
    a(f"s_mov_b32 s{SD+3}, 0x20000")
    for par in range(2):
        rm_voff(a, 12 + par, VL, par, pitch=F_PITCH)
        rm_voff(a, 14 + par, VL, par, pitch_log2=12)
    a(f"s_mul_i32 s54, s{S_CLS}, {F_CLS}")
    a(f"s_mul_i32 s55, s{S_ST}, {64*F_PITCH}")
    a(f"s_add_u32 s54, s54, s55")
    a(f"s_add_u32 s54, s54, {WS_F}")
    a(f"s_mul_i32 s55, s{S_ET}, {96*4096}")
    a(f"s_and_b32 s56, s{S_CLS}, 1")
    a(f"s_lshl_b32 s56, s56, 11")
    a(f"s_add_u32 s55, s55, s56")
    a(f"s_cmp_ge_u32 s{S_J}, 27")
    a(f"s_cselect_b32 s54, 0x40000000, s54")
    a(f"s_cselect_b32 s55, 0x40000000, s55")
    a(f"s_mov_b32 s56, {S1_BASE}")
    a(f"s_mov_b32 s{S_SRC}, {2*16384}")
    a(f"s_mov_b32 s{S_SLOT}, {2*16384}")
    a("s_waitcnt vmcnt(16)")
    a("s_barrier")
    a("s_waitcnt vmcnt(0)")
    def refill():
        for pp in range(16):
            a(f"s_add_u32 m0, s{S_SLOT}, {pp*1024}")
            a(f"s_add_u32 s{S_T}, s{S_SRC}, {pp*1024}")
            a(f"buffer_load_dwordx4 v{V16}, s[{SKV}:{SKV+3}], s{S_T} offen lds")
        a(f"s_add_u32 s{S_SRC}, s{S_SRC}, 16384")
        a(f"s_add_u32 s{S_SLOT}, s{S_SLOT}, 16384")
        a(f"s_cmp_eq_u32 s{S_SLOT}, {3*16384}")
        a(f"s_cselect_b32 s{S_SLOT}, 0, s{S_SLOT}")
    make_srd(a, SP, 12, 2 << 20)
    a(f"s_lshl_b32 s53, s{S_J}, 16")
    a(f"v_lshlrev_b32 v20, 6, v{VL}")
    a(f"s_bfe_u32 s57, s{S_X}, 0x10001")
    a(f"s_mul_i32 s57, s57, 320")
    a(f"s_mul_i32 s49, s{S_J}, 10")
    a(f"s_add_u32 s57, s57, s49")
    a(f"s_lshl_b32 s57, s57, 13")
    a(f"s_lshr_b32 s49, s{S_X}, 2")
    a(f"s_lshl_b32 s49, s49, 12")
    a(f"s_add_u32 s57, s57, s49")
    a(f"s_mov_b32 s49, {hex((1<<32)//18+1)}")
    for h in range(3):
        a(f"v_add_u32 v1, {64*h}, v{VL}")
        a(f"v_min_u32 v1, 179, v1")
        a(f"v_mul_hi_u32 v2, v1, s49")
        a(f"v_mul_u32_u24 v3, 18, v2")
        a(f"v_sub_u32 v1, v1, v3")
        a(f"v_lshlrev_b32 v1, 6, v1")
        a(f"v_lshl_add_u32 v{16+h}, v2, 13, v1")
    def s1loads():
        for p in range(8):
            a(f"s_add_u32 m0, s56, {p*1024}")
            a(f"s_add_u32 s{S_T}, s54, {p*8*F_PITCH}")
            a(f"buffer_load_dwordx4 v{12+(p&1)}, s[{SWS}:{SWS+3}], s{S_T} offen lds")
        for p in range(12):
            a(f"s_add_u32 m0, s56, {8192+p*1024}")
            a(f"s_add_u32 s{S_T}, s55, {p*8*4096}")
            a(f"buffer_load_dwordx4 v{14+(p&1)}, s[{SD}:{SD+3}], s{S_T} offen lds")
        a(f"s_add_u32 s54, s54, 128")
        a(f"s_add_u32 s55, s55, 128")
        a(f"s_add_u32 s56, s56, {S1_STG}")
    def wotouch():
        a(f"buffer_load_dword v21, v20, s[{SP}:{SP+3}], s53 offen")
        a(f"s_add_u32 s53, s53, 4096")
        a(f"buffer_load_dword v22, v20, s[{SP}:{SP+3}], s53 offen")
        a(f"s_add_u32 s53, s53, 4096")
    a(f"s_mov_b32 s47, 0")
    L2 = a.label("ld2")
    a(f"{L2}:")
    a("s_barrier")
    refill()
    wotouch()
    a(f"s_add_u32 s47, s47, 1")
    a(f"s_cmp_lt_u32 s47, 8")
    a("s_waitcnt vmcnt(2)")
    a(f"s_cbranch_scc1 {L2}")
    SP2 = 24
    make_srd(a, SP, 8, 8 << 20)
    make_srd(a, SP2, 10, 8 << 20)
    def seqtouch(h):
        a(f"buffer_load_dword v21, v{16+h}, s[{SP}:{SP+3}], s57 offen")
        a(f"buffer_load_dword v22, v{16+h}, s[{SP2}:{SP2+3}], s57 offen")
    a("s_barrier")
    refill()
    seqtouch(0)
    poll(1)
    a("s_waitcnt vmcnt(3)")
    a("s_barrier")
    refill()
    a("s_waitcnt vmcnt(16)")
    check()
    Lk2 = a.label("ok2")
    a(f"s_cbranch_scc1 {Lk2}")
    spin(1)
    a(f"s_cmp_eq_u32 s48, 0")
    a(f"s_cbranch_scc1 {Lk2}")
    a(f"s_cmp_ge_u32 s{S_J}, 27")
    a(f"s_cbranch_scc1 {Lk2}")
    a("s_mov_b32 s40, s54")
    a("s_mov_b32 s41, s55")
    make_srd(a, SBX, 100, 4 << 20)
    a(f"s_mul_i32 s48, s{S_ST}, 320")
    a("s_mov_b32 s47, 0")
    Lff = a.label("ffb")
    a(f"{Lff}:")
    a(f"s_add_u32 s{S_U}, s48, s47")
    fold_loads(a, 0, VL)
    a("s_waitcnt vmcnt(0)")
    fold_compute(a, 0, SWS)
    a("s_add_u32 s47, s47, 1")
    a("s_cmp_lt_u32 s47, 320")
    a(f"s_cbranch_scc1 {Lff}")
    a("s_waitcnt vmcnt(0)")
    a("s_mov_b32 s54, s40")
    a("s_mov_b32 s55, s41")
    make_srd(a, SP, 8, 8 << 20)
    a(f"{Lk2}:")
    s1loads()
    a(f"s_mov_b32 s47, 0")
    L1 = a.label("ld1")
    a(f"{L1}:")
    a("s_waitcnt vmcnt(20)")
    a("s_barrier")
    refill()
    s1loads()
    a(f"s_add_u32 s47, s47, 1")
    a(f"s_cmp_lt_u32 s47, 4")
    a(f"s_cbranch_scc1 {L1}")
    a("s_waitcnt vmcnt(20)")
    a("s_barrier")
    seqtouch(1)
    seqtouch(2)
    a("s_waitcnt vmcnt(4)")
    a("s_barrier")
    a(f"s_branch {Lend}")
    a(f"{Lcomp}:")
    pre_part(a, VL, V16, S_W, S_X, S_J, S_T, SWS)
    rm_frag_addr(a, 6, VL)
    a(f"s_lshl_b32 s{S_T}, s{S_MB}, 12")
    a(f"s_add_u32 s{S_T}, s{S_T}, {S1_BASE}")
    a(f"v_add_u32 v6, s{S_T}, v6")
    for u in range(4):
        a(f"v_xor_b32 v{QB+u}, {u*32}, v6")
    kn_frag_addr(a, QB + 4, VL, S_HD, False)
    a(f"v_add_u32 v{QB+4}, {S1_BASE}, v{QB+4}")
    pre_bar = None
    a(f"s_mov_b32 s47, 0")
    a(f"s_cmp_eq_u32 s{S_W}, 7")
    a(f"s_cselect_b32 s48, {FLAG_STEP}, 99")
    def post_bar():
        Lx, Ly, Lz = a.label("nfx"), a.label("nfy"), a.label("nfz")
        a(f"s_cmp_lt_u32 s{pipe.S_CNT}, s48")
        a(f"s_cbranch_scc1 {Lx}")
        a(f"s_cbranch_scc0 {Ly}")
        a(f"{Ly}:")
        a(f"s_cmp_eq_u32 s47, 0")
        a(f"s_mov_b32 s47, 1")
        a(f"s_cbranch_scc1 {Lz}")
        a("s_waitcnt vmcnt(0)")
        a("v_readfirstlane_b32 s3, v56")
        a("s_cmp_lg_u32 s3, 1")
        a(f"s_cbranch_scc1 {Lz}")
        flag(0)
        a(f"s_mov_b32 s48, 99")
        a(f"s_branch {Lx}")
        a(f"{Lz}:")
        ann(56)
        a(f"s_add_u32 s48, s{pipe.S_CNT}, {int(os.environ.get('FGAP', '3'))}")
        a(f"{Lx}:")
    pipe.compute(qph, True, pre_bar=pre_bar, post_bar=post_bar)
    mark(a, 3)
    cq = (32 ** -0.5) * math.log2(math.e)
    a(f"s_mov_b32 s{S_T}, {hex(f32bits(cq))}")
    a("s_nop 9")
    pack16(a, Q, QACC, S_T)
    Linit, Lfb = a.label("init"), a.label("fb")
    a(f"{Linit}:")
    a(f"v_add_u32 v{APREV}, {2*16384}, v{V16}")
    a(f"v_mov_b32 v{ACUR}, v{V16}")
    a(f"v_add_u32 v{ANEXT}, 16384, v{V16}")
    a(f"v_mov_b32 v{VLS}, 0")
    for r in range(16):
        a(f"v_mov_b32 v{O+r}, 0")
    for r in range(8):
        a(f"v_mov_b32 v{P[1]+r}, 0")
        a(f"v_mov_b32 v{VF+r}, 0")
    for r in range(4):
        a(f"v_mov_b32 v{LT+r}, 0")
    a(f"v_bfe_u32 v1, v{VL}, 4, 1")
    a(f"v_bfe_u32 v2, v{VL}, 2, 1")
    a(f"v_cmp_eq_u32 vcc, v1, v2")
    a(f"v_mov_b32 v1, 0x3f803f80")
    a("s_nop 1")
    for r in range(4):
        a(f"v_cndmask_b32 v{ONES+r}, 0, v1, vcc")
    S_TH = 48
    a(f"s_mov_b32 s{S_TH}, {hex(f32bits(THRESH))}")
    a("s_waitcnt vmcnt(0)")
    a("s_barrier")
    mark(a, 1)
    a(f"ds_read_b128 {vr(KF,4)}, v{ACUR}")
    a(f"ds_read_b128 {vr(KF+4,4)}, v{ACUR} offset:1024")
    a(f"v_mov_b32 v1, {DW}")
    a(f"ds_read_b32 v2, v1")
    a("s_waitcnt lgkmcnt(0)")
    a("v_readfirstlane_b32 s3, v2")
    a("s_cmp_lg_u32 s3, 0")
    a(f"s_cbranch_scc1 {Lfb}")
    a(mfma32(S[0], KF, Q, "0"))
    a(mfma32(S[0], KF+4, Q+4))
    a(f"ds_read_b128 {vr(KF,4)}, v{ACUR} offset:4096")
    a(f"ds_read_b128 {vr(KF+4,4)}, v{ACUR} offset:{4096+1024}")
    S_C = 47
    a(f"s_mov_b32 s{S_C}, 0")
    a("s_nop 11")
    def rowmax(X):
        a(f"v_max3_f32 v1, v{X}, v{X+1}, v{X+2}")
        for r in range(3, 15, 2):
            a(f"v_max3_f32 v1, v1, v{X+r}, v{X+r+1}")
        a(f"v_max_f32 v1, v1, v{X+15}")
        a(f"v_mov_b32 v2, v1")
        a("s_nop 1")
        a(f"v_permlane32_swap_b32 v1, v2")
        a("s_nop 1")
        a(f"v_max_f32 v1, v1, v2")
        a(f"v_add_f32 v1, {hex(f32bits(BIAS))}, v1")
    rowmax(S[0])
    a(f"v_mov_b32 v{VM}, v1")
    a(f"v_sub_f32 v3, 0, v1")
    for r in range(16):
        a(f"v_mov_b32 v{CM+r}, v3")
        a(f"v_sub_f32 v{S[0]+r}, v{S[0]+r}, v1")
    if TIMING:
        a("s_mov_b32 s83, 0")
    a("s_waitcnt lgkmcnt(0)")
    Lloop = a.label("loop")
    slow = []
    def kaddr(j):
        if j < 0: return APREV, (4 + j) * 4096
        if j < 4: return ACUR, j * 4096
        return ANEXT, (j - 4) * 4096
    def tile(j, final=False):
        p = j & 1
        Sc, Sn, Pc, Pp = S[p], S[1-p], P[p], P[1-p]
        e = lambda r: a(f"v_exp_f32 v{Sc+r}, v{Sc+r}")
        c = lambda r: a(f"v_cvt_pk_bf16_f32 v{Pc+r}, v{Sc+2*r}, v{Sc+2*r+1}")
        pre = []
        def pe(r): pre.append(f"v_exp_f32 v{Sc+r}, v{Sc+r}"); e(r)
        def pc(r): pre.append(f"v_cvt_pk_bf16_f32 v{Pc+r}, v{Sc+2*r}, v{Sc+2*r+1}"); c(r)
        if j == 2 and not final:
            a("s_barrier")
        if not (ABL & 64): a(f"s_setprio {3 - ((j + 2) & 3)}")
        Ls, Lr = a.label("slow"), a.label("ret")
        if final:
            a("s_waitcnt lgkmcnt(0)")
            a("s_nop 1")
            a(mfma16(LT, ONES, Pp+4))
            a("s_nop 7")
            a(f"v_cmp_nge_f32 vcc, s{S_TH}, v{LT}")
            a(f"s_cbranch_vccnz {Ls}")
            a(f"{Lr}:")
            slow.append((Ls, Lr, j, pre, final))
            a(mfma32(O, VF, Pp))
            a(f"v_add_f32 v{VLS}, v{VLS}, v{LT}")
            a(mfma32(O, VF+4, Pp+4))
            return
        a("s_waitcnt lgkmcnt(2)")
        a(mfma32(Sn, KF, Q, CM))
        pe(0); pe(1); pe(2)
        a(mfma16(LT, ONES, Pp+4))
        pe(3); pc(0); pe(4)
        a(mfma32(Sn, KF+4, Q+4))
        pe(5); pc(1); pe(6); pe(7)
        a(f"v_cmp_nge_f32 vcc, s{S_TH}, v{LT}")
        v, off = kaddr(j + 2)
        a(f"ds_read_b128 {vr(KF,4)}, v{v} offset:{off}")
        pc(2)
        a(f"ds_read_b128 {vr(KF+4,4)}, v{v} offset:{off+1024}")
        a("s_waitcnt lgkmcnt(2)")
        a(f"s_cbranch_vccnz {Ls}")
        a(f"{Lr}:")
        slow.append((Ls, Lr, j, pre, final))
        a(mfma32(O, VF, Pp))
        a(f"v_add_f32 v{VLS}, v{VLS}, v{LT}")
        e(8); e(9); c(3); e(10)
        a(mfma32(O, VF+4, Pp+4))
        e(11); c(4); e(12); e(13)
        a(mfma16(LT, ONES, Pc, "0"))
        a(f"ds_read_b128 {vr(VF,4)}, v{ACUR} offset:{j*4096+2048}")
        c(5)
        a(f"ds_read_b128 {vr(VF+4,4)}, v{ACUR} offset:{j*4096+3072}")
        e(14); e(15); c(6); c(7)
    a(f"{Lloop}:")
    for j in range(4):
        tile(j)
    a(f"v_mov_b32 v1, v{APREV}")
    a(f"v_mov_b32 v{APREV}, v{ACUR}")
    a(f"v_mov_b32 v{ACUR}, v{ANEXT}")
    a(f"v_mov_b32 v{ANEXT}, v1")
    a(f"s_add_u32 s{S_C}, s{S_C}, 1")
    a(f"s_cmp_lt_u32 s{S_C}, 16")
    a(f"s_cbranch_scc1 {Lloop}")
    tile(0, final=True)
    a(f"v_rcp_f32 v1, v{VLS}")
    a("s_nop 11")
    for r in range(16):
        a(f"v_mul_f32 v{O+r}, v{O+r}, v1")
    pack16(a, T, O)
    a(f"s_add_u32 s{S_T}, s{S_RG}, {WS_O}")
    a(f"buffer_store_dwordx4 {vr(T,4)}, v{V16}, s[{SWS}:{SWS+3}], s{S_T} offen")
    a(f"buffer_store_dwordx4 {vr(T+4,4)}, v{V16}, s[{SWS}:{SWS+3}], s{S_T} offen offset:1024")
    mark(a, 2)
    Lfin = a.label("fin")
    a(f"s_cmp_ge_u32 s{S_J}, 27")
    a(f"s_cbranch_scc1 {Lfin}")
    a(f"s_cmp_ge_u32 s{S_W}, 6")
    a(f"s_cbranch_scc1 {Lfin}")
    a(f"s_cmp_ge_u32 s{S_W}, 3")
    a(f"s_cselect_b32 s53, 1, 0")
    a(f"s_mul_i32 s54, s53, 3")
    a(f"s_sub_u32 s54, s{S_W}, s54")
    rm_frag_addr(a, 6, VL)
    a(f"s_lshl_b32 s55, s53, 12")
    a(f"s_add_u32 s55, s55, {S1_BASE}")
    a(f"s_lshl_b32 s56, s54, 12")
    a(f"s_add_u32 s56, s56, {S1_BASE + 8192}")
    VA = 12
    for u in range(4):
        a(f"v_xor_b32 v7, {u*32}, v6")
        a(f"v_add_u32 v{VA+u}, s55, v7")
        a(f"v_add_u32 v{VA+4+u}, s56, v7")
    FA = 28
    ACC = S[0]
    for k in range(5):
        off = k * S1_STG
        if off + 0 >= 65536:
            for i in range(8): a(f"v_add_u32 v{VA+i}, 0x10000, v{VA+i}")
            off -= 65536
        for u in range(4):
            a(f"ds_read_b128 {vr(FA+8*u,4)}, v{VA+u} offset:{off}")
            a(f"ds_read_b128 {vr(FA+8*u+4,4)}, v{VA+4+u} offset:{off}")
        for u in range(4):
            a(f"s_waitcnt lgkmcnt({6-2*u})")
            a(mfma32(ACC, FA+8*u, FA+8*u+4, "0" if (k == 0 and u == 0) else None))
    a(f"s_mul_i32 s55, s{S_CLS}, {G_CLS}")
    a(f"s_mul_i32 s56, s{S_ET}, 3")
    a(f"s_add_u32 s56, s56, s54")
    a(f"s_mul_i32 s56, s56, {G_EB}")
    a(f"s_add_u32 s55, s55, s56")
    a(f"s_lshl_b32 s56, s{S_ST}, 1")
    a(f"s_add_u32 s56, s56, s53")
    a(f"s_lshl_b32 s56, s56, 11")
    a(f"s_add_u32 s55, s55, s56")
    a(f"s_add_u32 s55, s55, {WS_G}")
    a("s_nop 3")
    pack16(a, R, ACC)
    swap_natural(a, R)
    a(f"buffer_store_dwordx4 {vr(R,4)}, v{V16}, s[{SWS}:{SWS+3}], s55 offen")
    a(f"buffer_store_dwordx4 {vr(R+4,4)}, v{V16}, s[{SWS}:{SWS+3}], s55 offen offset:1024")
    a(f"{Lfin}:")
    stamp_end(a)
    dump_marks(a)
    a(f"{Lend}:")
    a("s_endpgm")
    a(f"{Lfb}:")
    a("s_barrier")
    a("s_mov_b32 s74, 0")
    Lfl = a.label("fbl")
    a(f"{Lfl}:")
    a("s_and_b32 s72, s74, 7")
    a("s_lshr_b32 s73, s74, 3")
    pre_part(a, VL, V16, S_W, 72, 73, S_T, SWS, lead=False)
    a("s_waitcnt lgkmcnt(0)")
    a("s_barrier")
    a("s_add_u32 s74, s74, 1")
    a("s_cmp_lt_u32 s74, 256")
    a(f"s_cbranch_scc1 {Lfl}")
    a("s_waitcnt vmcnt(0)")
    a("s_barrier")
    a(f"s_branch {Linit}")
    for (Ls, Lr, j, pre, final) in slow:
        p = j & 1
        Sc, Sn, Pc, Pp = S[p], S[1-p], P[p], P[1-p]
        a(f"{Ls}:")
        if TIMING: a("s_add_u32 s83, s83, 1")
        def rdk(jj):
            v, off = kaddr(jj)
            a(f"ds_read_b128 {vr(T,4)}, v{v} offset:{off}")
            a(f"ds_read_b128 {vr(T+4,4)}, v{v} offset:{off+1024}")
            a("s_waitcnt lgkmcnt(0)")
        rdk(j - 1)
        a(mfma32(R, T, Q, "0"))
        a(mfma32(R, T+4, Q+4))
        a("s_nop 15")
        rowmax(R)
        a(f"v_max_f32 v1, v1, v{VM}")
        a(f"v_sub_f32 v2, v{VM}, v1")
        a(f"v_mul_f32 v2, 0.5, v2")
        a(f"v_exp_f32 v2, v2")
        a(f"v_mov_b32 v{VM}, v1")
        a(f"v_sub_f32 v3, 0, v1")
        for r in range(16):
            a(f"v_mul_f32 v{O+r}, v{O+r}, v2")
            a(f"v_mov_b32 v{CM+r}, v3")
            a(f"v_mul_f32 v{O+r}, v{O+r}, v2")
            a(f"v_sub_f32 v{R+r}, v{R+r}, v1")
        a(f"v_mul_f32 v{VLS}, v{VLS}, v2")
        a(f"v_mul_f32 v{VLS}, v{VLS}, v2")
        for r in range(16):
            a(f"v_exp_f32 v{R+r}, v{R+r}")
        a("s_nop 0")
        for r in range(8):
            a(f"v_cvt_pk_bf16_f32 v{Pp+r}, v{R+2*r}, v{R+2*r+1}")
        a("s_nop 1")
        a(mfma16(LT, ONES, Pp, "0"))
        a(mfma16(LT, ONES, Pp+4))
        if not final:
            rdk(j)
            a(mfma32(Sc, T, Q, CM))
            a(mfma32(Sc, T+4, Q+4))
            a("s_nop 7")
            rdk(j + 1)
            a(mfma32(Sn, T, Q, CM))
            a(mfma32(Sn, T+4, Q+4))
        a("s_nop 15")
        for s in pre:
            a("s_nop 0")
            a(s)
        a("s_nop 1")
        a(f"s_branch {Lr}")
    kernel_end(a, name, NV, sgpr=102)
```

```python
from common import *
from gemm import *

S1_SLOTS = 4
S1_STAGE = 16384 + 12288
S1_LDS = S1_SLOTS * S1_STAGE
S1_WGS = 108

def sdiv(a, q, x, d, t):
    m = (1 << 32) // d + 1
    a(f"s_mov_b32 s{t}, {hex(m)}")
    a(f"s_mul_hi_u32 s{q}, s{x}, s{t}")

def gen_s1(a, name):
    kernel_begin(a, name)
    Lend = a.label("end")
    a(f"s_cmp_ge_u32 s2, {S1_WGS}")
    a(f"s_cbranch_scc1 {Lend}")
    stamp_begin(a)
    load_ptr(a, 4, "hid_re"); load_ptr(a, 6, "hid_im"); load_ptr(a, 14, "ws")
    S_W, S_TY, S_B, S_ST, S_ET, S_T = 42, 43, 44, 45, 46, 64
    VL = 4
    lane_wave(a, VL, S_W)
    sdiv(a, S_TY, 2, 54, S_T)
    a(f"s_mul_i32 s47, s{S_TY}, 54")
    a(f"s_sub_u32 s47, s2, s47")
    sdiv(a, S_B, 47, 27, S_T)
    a(f"s_mul_i32 s48, s{S_B}, 27")
    a(f"s_sub_u32 s47, s47, s48")
    sdiv(a, S_ST, 47, 3, S_T)
    a(f"s_mul_i32 s48, s{S_ST}, 3")
    a(f"s_sub_u32 s{S_ET}, s47, s48")
    a("s_waitcnt lgkmcnt(0)")
    SD, SWS = 16, 32
    a(f"s_cmp_eq_u32 s{S_TY}, 0")
    a(f"s_cselect_b32 s{SD}, s4, s6")
    a(f"s_cselect_b32 s{SD+1}, s5, s7")
    a(f"s_mov_b32 s{SD+2}, {2<<20}")
    a(f"s_mov_b32 s{SD+3}, 0x20000")
    make_srd(a, SWS, 14, WS_SIZE)
    VX, VW = 8, 12
    for p in range(4):
        rm_voff(a, VX + p, VL, p & 1, pitch=F_PITCH)
        if p:
            a(f"v_add_u32 v{VX+p}, {p*8*F_PITCH}, v{VX+p}")
    rm_voff(a, 5, VL, 0, pitch_log2=12)
    rm_voff(a, 6, VL, 1, pitch_log2=12)
    a(f"s_and_b32 s{S_T}, s{S_W}, 1")
    a(f"s_cmp_eq_u32 s{S_T}, 0")
    a(f"s_cselect_b64 vcc, -1, 0")
    a("s_nop 1")
    a(f"v_cndmask_b32 v{VW}, v6, v5, vcc")
    a(f"v_cndmask_b32 v{VW+1}, v5, v6, vcc")
    a(f"v_add_u32 v{VW+2}, {16*4096}, v{VW}")
    a(f"v_add_u32 v{VW+1}, {8*4096}, v{VW+1}")
    S_XB, S_WB, S_LX, S_LW, S_CLS = 58, 59, 61, 62, 63
    a(f"s_lshl_b32 s{S_CLS}, s{S_TY}, 2")
    a(f"s_and_b32 s{S_T}, s{S_W}, 2")
    a(f"s_add_u32 s{S_CLS}, s{S_CLS}, s{S_T}")
    a(f"s_add_u32 s{S_CLS}, s{S_CLS}, s{S_B}")
    a(f"s_mul_i32 s{S_XB}, s{S_CLS}, {F_CLS}")
    a(f"s_lshl_b32 s47, s{S_ST}, 1")
    a(f"s_and_b32 s{S_T}, s{S_W}, 1")
    a(f"s_add_u32 s47, s47, s{S_T}")
    a(f"s_mul_i32 s{S_T}, s47, {32*F_PITCH}")
    a(f"s_add_u32 s{S_XB}, s{S_XB}, s{S_T}")
    a(f"s_add_u32 s{S_XB}, s{S_XB}, {WS_F}")
    a(f"s_mul_i32 s{S_WB}, s{S_ET}, {96*4096}")
    a(f"s_mul_i32 s{S_T}, s{S_W}, {24*4096}")
    a(f"s_add_u32 s{S_WB}, s{S_WB}, s{S_T}")
    a(f"s_lshl_b32 s{S_T}, s{S_B}, 11")
    a(f"s_add_u32 s{S_WB}, s{S_WB}, s{S_T}")
    a(f"s_lshl_b32 s{S_LX}, s{S_W}, 12")
    a(f"s_mul_i32 s{S_LW}, s{S_W}, 3072")
    pieces = [Piece(SWS, VX + p, S_XB, 128, 0, S_LX, p * 1024) for p in range(4)]
    pieces += [Piece(SD, VW + p, S_WB, 128, 0, S_LW, 16384 + p * 1024) for p in range(3)]
    VA = 16
    def abank(idx, bank): return VA + bank * 8 + idx
    rm_frag_addr(a, 5, VL)
    a(f"v_add_u32 v6, s{S_LX}, v5")
    for u in range(4):
        a(f"v_xor_b32 v{VA+u}, {u*32}, v6")
        a(f"v_xor_b32 v{VA+4+u}, {u*32}, v5")
    for i in range(8):
        a(f"v_add_u32 v{VA+8+i}, 0x10000, v{VA+i}")
    FR = 40
    frags = [Frag('b128', lambda u: (u, 0), [FR, FR + 16])]
    for e in range(3):
        frags.append(Frag('b128', (lambda e: lambda u: (4 + u, 16384 + e * 4096))(e), [FR + 4 + 4*e, FR + 20 + 4*e]))
    ACC = 80
    mf = [(ACC + 16*e, 0, 1 + e) for e in range(3)]
    gemm_loop(a, 5, S1_SLOTS, S1_STAGE, pieces, frags, mf, abank, S_T)
    a(f"v_lshlrev_b32 v5, 4, v{VL}")
    a(f"s_mul_i32 s66, s{S_CLS}, {G_CLS}")
    a(f"s_mul_i32 s{S_T}, s{S_ET}, {3*G_EB}")
    a(f"s_add_u32 s66, s66, s{S_T}")
    a(f"s_lshl_b32 s{S_T}, s47, 11")
    a(f"s_add_u32 s66, s66, s{S_T}")
    a(f"s_add_u32 s66, s66, {WS_G}")
    a("s_nop 7")
    PK = 128
    for e in range(3):
        pack16(a, PK + 8*e, ACC + 16*e)
        swap_natural(a, PK + 8*e)
        a(f"s_add_u32 s67, s66, {e*G_EB}")
        a(f"buffer_store_dwordx4 {vr(PK+8*e,4)}, v5, s[{SWS}:{SWS+3}], s67 offen")
        a(f"buffer_store_dwordx4 {vr(PK+8*e+4,4)}, v5, s[{SWS}:{SWS+3}], s67 offen offset:1024")
    stamp_end(a)
    dump_marks(a)
    a(f"{Lend}:")
    a("s_endpgm")
    kernel_end(a, name, 160)

S2_SLOTS = 4
S2_STAGE = 32768
S2_LDS = S2_SLOTS * S2_STAGE
S2_WGS = 162

def gen_s2(a, name):
    kernel_begin(a, name)
    Lend = a.label("end")
    a(f"s_cmp_ge_u32 s2, {S2_WGS}")
    a(f"s_cbranch_scc1 {Lend}")
    stamp_begin(a)
    load_ptr(a, 4, "seq_re"); load_ptr(a, 6, "seq_im"); load_ptr(a, 12, "out"); load_ptr(a, 14, "ws")
    S_W, S_CA, S_TT, S_EB, S_T = 42, 43, 45, 46, 64
    VL = 4
    lane_wave(a, VL, S_W)
    sdiv(a, S_CA, 2, 81, S_T)
    a(f"s_mul_i32 s47, s{S_CA}, 81")
    a(f"s_sub_u32 s47, s2, s47")
    sdiv(a, S_TT, 47, 9, S_T)
    a(f"s_mul_i32 s48, s{S_TT}, 9")
    a(f"s_sub_u32 s{S_EB}, s47, s48")
    a("s_waitcnt lgkmcnt(0)")
    SD, SO, SWS = 16, 28, 32
    a(f"s_cmp_lt_u32 s{S_W}, 2")
    a(f"s_cselect_b32 s{SD}, s4, s6")
    a(f"s_cselect_b32 s{SD+1}, s5, s7")
    a(f"s_mov_b32 s{SD+2}, {8<<20}")
    a(f"s_mov_b32 s{SD+3}, 0x20000")
    make_srd(a, SWS, 14, WS_SIZE)
    make_srd(a, SO, 12, 8 << 20)
    VX, VW = 8, 12
    for p in range(4):
        rm_voff(a, VX + p, VL, p & 1, pitch_log2=13)
        if p:
            a(f"v_add_u32 v{VX+p}, {p*8*8192}, v{VX+p}")
    a(f"v_lshlrev_b32 v{VW}, 4, v{VL}")
    S_XB, S_WB, S_LX, S_LO, S_HI = 58, 59, 61, 62, 63
    a(f"s_and_b32 s{S_LO}, s{S_W}, 1")
    a(f"s_lshr_b32 s{S_HI}, s{S_W}, 1")
    a(f"s_lshl_b32 s{S_XB}, s{S_TT}, 1")
    a(f"s_add_u32 s{S_XB}, s{S_XB}, s{S_LO}")
    a(f"s_lshl_b32 s{S_XB}, s{S_XB}, 18")
    a(f"s_lshl_b32 s{S_T}, s{S_CA}, 12")
    a(f"s_add_u32 s{S_XB}, s{S_XB}, s{S_T}")
    a(f"s_lshl_b32 s{S_WB}, s{S_HI}, 2")
    a(f"s_lshl_b32 s{S_T}, s{S_CA}, 1")
    a(f"s_add_u32 s{S_WB}, s{S_WB}, s{S_T}")
    a(f"s_add_u32 s{S_WB}, s{S_WB}, s{S_LO}")
    a(f"s_mul_i32 s{S_WB}, s{S_WB}, {G_CLS}")
    a(f"s_mul_i32 s{S_T}, s{S_EB}, {G_EB}")
    a(f"s_add_u32 s{S_WB}, s{S_WB}, s{S_T}")
    a(f"s_add_u32 s{S_WB}, s{S_WB}, {WS_G}")
    a(f"s_lshl_b32 s{S_LX}, s{S_W}, 12")
    pieces = [Piece(SD, VX + p, S_XB, 128, 0, S_LX, p * 1024) for p in range(4)]
    pieces += [Piece(SWS, VW, S_WB, 4096, p * 1024, S_LX, 16384 + p * 1024) for p in range(4)]
    VA = 16
    def abank(idx, bank): return VA + bank * 5 + idx
    rm_frag_addr(a, 5, VL)
    a(f"s_lshl_b32 s{S_T}, s{S_HI}, 12")
    a(f"v_add_u32 v5, s{S_T}, v5")
    for u in range(4):
        a(f"v_xor_b32 v{VA+u}, {u*32}, v5")
    a(f"s_lshl_b32 s{S_T}, s{S_LO}, 12")
    a(f"v_add_u32 v{VA+4}, s{S_T}, v{VW}")
    for i in range(5):
        a(f"v_add_u32 v{VA+5+i}, 0x10000, v{VA+i}")
    FR = 40
    frags = [
        Frag('b128', lambda u: (u, 0), [FR, FR + 16]),
        Frag('b128', lambda u: (u, 8192), [FR + 4, FR + 20]),
        Frag('b128', lambda u: (4, 16384 + u * 1024), [FR + 8, FR + 24]),
        Frag('b128', lambda u: (4, 16384 + 8192 + u * 1024), [FR + 12, FR + 28]),
    ]
    ACC = 80
    mf = [(ACC, 0, 2), (ACC + 16, 1, 3)]
    gemm_loop(a, 9, S2_SLOTS, S2_STAGE, pieces, frags, mf, abank, S_T)
    s2_epilogue(a, VL, ACC, S_CA, S_TT, S_EB, S_HI, S_LO, SO, S_T)
    stamp_end(a)
    dump_marks(a)
    a(f"{Lend}:")
    a("s_endpgm")
    kernel_end(a, name, 160)

def s2_epilogue(a, VL, ACC, S_CA, S_TT, S_EB, S_TB, S_B, SO, S_T):
    BIG = 0x40000000
    a(f"v_and_b32 v1, 31, v{VL}")
    a(f"s_lshl_b32 s66, s{S_EB}, 6")
    a(f"s_add_u32 s66, s66, s{S_B}")
    a(f"v_lshl_add_u32 v5, v1, 1, s66")
    a(f"v_lshrrev_b32 v1, 5, v{VL}")
    a(f"s_lshl_b32 s66, s{S_TT}, 7")
    a(f"s_lshl_b32 s67, s{S_TB}, 6")
    a(f"s_add_u32 s66, s66, s67")
    a(f"s_add_u32 s66, s66, s{S_CA}")
    a(f"v_lshl_add_u32 v6, v1, 3, s66")
    a(f"s_mov_b32 s68, {hex(BIG)}")
    a(f"v_mov_b32 v2, s68")
    a(f"v_lshlrev_b32 v7, 1, v5")
    a(f"v_add_u32 v8, 2048, v7")
    a(f"v_cmp_ge_u32 vcc, 512, v5")
    a("s_nop 1")
    a(f"v_cndmask_b32 v8, v2, v8, vcc")
    a(f"v_sub_u32 v9, 4096, v7")
    a(f"v_subrev_u32 v1, 1, v5")
    a(f"v_cmp_gt_u32 vcc, 511, v1")
    a("s_nop 1")
    a(f"v_cndmask_b32 v9, v2, v9, vcc")
    a("s_nop 7")
    for r in range(16):
        g, rr = r >> 2, r & 3
        dt = 2 * (8 * g + rr)
        P, Q = ACC + r, ACC + 16 + r
        a(f"v_add_u32 v10, {dt}, v6")
        a(f"v_sub_f32 v1, v{P}, v{Q}")
        a(f"v_add_f32 v3, v{P}, v{Q}")
        a(f"v_cvt_pk_bf16_f32 v11, v1, v3")
        a(f"v_lshlrev_b32 v12, 12, v10")
        a(f"v_cmp_ge_u32 vcc, 1024, v10")
        a(f"v_sub_u32 v13, 2048, v10")
        a(f"v_lshlrev_b32 v13, 12, v13")
        a(f"v_cndmask_b32 v12, v2, v12, vcc")
        a(f"v_cmp_ge_u32 vcc, 1023, v10")
        a(f"v_add_u32 v14, v12, v8")
        a(f"v_add_u32 v15, v12, v9")
        a(f"v_cndmask_b32 v13, v2, v13, vcc")
        a(f"buffer_store_short v11, v14, s[{SO}:{SO+3}], 0 offen")
        a(f"buffer_store_short_d16_hi v11, v15, s[{SO}:{SO+3}], 0 offen")
        a(f"v_add_u32 v14, v13, v9")
        a(f"v_add_u32 v15, v13, v8")
        a(f"buffer_store_short v11, v14, s[{SO}:{SO+3}], 0 offen")
        a(f"buffer_store_short_d16_hi v11, v15, s[{SO}:{SO+3}], 0 offen")

def s2_epilogue2(a, VL, ACC, S_CA, S_TT, S_EB, S_W, S_TB, S_B, SO, S_T, lds_base=0):
    BIG = 0x40000000
    PIT, ARR = 144, 64 * 144
    a("s_barrier")
    a(f"v_lshrrev_b32 v1, 5, v{VL}")
    a(f"s_lshl_b32 s66, s{S_TB}, 5")
    a(f"v_lshl_add_u32 v1, v1, 2, s66")
    a(f"v_mul_u32_u24 v1, {PIT}, v1")
    a(f"v_and_b32 v2, 31, v{VL}")
    a(f"v_lshlrev_b32 v2, 2, v2")
    a(f"s_lshl_b32 s66, s{S_B}, 1")
    a(f"v_add_u32 v2, s66, v2")
    a(f"v_add_u32 v5, v1, v2")
    a(f"v_sub_u32 v6, v1, v2")
    a(f"v_add_u32 v6, 128, v6")
    for r in range(16):
        g, rr = r >> 2, r & 3
        P, Q = ACC + r, ACC + 16 + r
        a(f"v_sub_f32 v1, v{P}, v{Q}")
        a(f"v_add_f32 v3, v{P}, v{Q}")
        a(f"v_cvt_pk_bf16_f32 v{P}, v1, v3")
        o = lds_base + (8 * g + rr) * PIT
        a(f"ds_write_b16 v5, v{P} offset:{o}")
        a(f"ds_write_b16_d16_hi v5, v{P} offset:{o + ARR}")
        a(f"ds_write_b16_d16_hi v6, v{P} offset:{o + 2*ARR}")
        a(f"ds_write_b16 v6, v{P} offset:{o + 3*ARR}")
    a(f"v_lshrrev_b32 v7, 3, v{VL}")
    a(f"v_and_b32 v8, 7, v{VL}")
    a(f"v_mul_u32_u24 v9, {PIT}, v7")
    a(f"s_mul_i32 s66, s{S_W}, {ARR}")
    a(f"v_add_u32 v9, s66, v9")
    a(f"v_lshl_add_u32 v10, v8, 4, v9")
    a(f"s_mov_b32 s68, {hex(BIG)}")
    a(f"v_mov_b32 v2, s68")
    a(f"s_lshl_b32 s66, s{S_EB}, 7")
    a(f"s_add_u32 s67, s66, 2048")
    a(f"s_sub_u32 s66, {4096-128}, s66")
    a(f"s_cmp_ge_u32 s{S_W}, 2")
    a(f"s_cselect_b32 s66, s66, s67")
    a(f"s_cselect_b32 s69, 1, 0")
    a(f"v_lshl_add_u32 v11, v8, 4, s66")
    a(f"v_cmp_le_u32 vcc, s69, v8")
    a(f"s_cmp_lt_u32 s{S_EB}, 8")
    a(f"s_cselect_b64 s[70:71], vcc, 0")
    a("s_nop 1")
    a(f"v_cndmask_b32 v11, v2, v11, s[70:71]")
    a(f"v_add_u32 v12, 1, v8")
    a(f"v_cmp_eq_u32 vcc, 7, v8")
    a(f"v_mov_b32 v1, 64")
    a("s_nop 1")
    a(f"v_cndmask_b32 v12, v12, v1, vcc")
    a(f"v_mul_u32_u24 v12, s69, v12")
    a(f"v_lshlrev_b32 v12, 1, v12")
    a(f"v_add_u32 v13, v9, v12")
    a(f"v_add_u32 v12, s66, v12")
    a(f"s_not_b64 s[72:73], vcc")
    a(f"s_cmp_eq_u32 s{S_EB}, 0")
    a(f"s_cselect_b64 s[72:73], s[72:73], -1")
    a(f"s_cmp_lt_u32 s{S_EB}, 8")
    a(f"s_cselect_b64 s[72:73], s[72:73], 0")
    a(f"v_cmp_eq_u32 vcc, 0, v8")
    a(f"s_cmp_eq_u32 s{S_EB}, 8")
    a(f"s_cselect_b64 s[74:75], vcc, 0")
    a(f"s_cmp_lg_u32 s69, 0")
    a(f"s_cselect_b64 s[72:73], s[72:73], s[74:75]")
    a("s_nop 1")
    a(f"v_cndmask_b32 v12, v2, v12, s[72:73]")
    a(f"s_lshl_b32 s66, s{S_TT}, 7")
    a(f"s_add_u32 s66, s66, s{S_CA}")
    a(f"v_lshl_add_u32 v7, v7, 1, s66")
    a(f"s_and_b32 s67, s{S_W}, 1")
    a(f"s_sub_u32 s74, 1024, s67")
    a("s_waitcnt lgkmcnt(0)")
    a("s_barrier")
    D = ACC
    for i in range(8):
        a(f"ds_read_b128 {vr(D+4*i,4)}, v10 offset:{lds_base + i*8*PIT}")
    for i in range(8):
        a(f"ds_read_u16 v{40+i}, v13 offset:{lds_base + i*8*PIT}")
    for i in range(8):
        a(f"v_add_u32 v1, {16*i}, v7")
        a(f"v_sub_u32 v3, 2048, v1")
        a(f"s_cmp_lg_u32 s67, 0")
        a(f"s_cselect_b64 vcc, -1, 0")
        a(f"v_cmp_ge_u32 s[70:71], s74, v1")
        a(f"v_cndmask_b32 v3, v1, v3, vcc")
        a(f"v_lshlrev_b32 v3, 12, v3")
        a(f"v_cndmask_b32 v{48+i}, v2, v3, s[70:71]")
    for i in range(8):
        a(f"v_add_u32 v1, v{48+i}, v11")
        a(f"s_waitcnt lgkmcnt({15-i})")
        a(f"buffer_store_dwordx4 {vr(D+4*i,4)}, v1, s[{SO}:{SO+3}], 0 offen")
    Lsk = a.label("noedge")
    a(f"s_cmp_eq_u64 s[72:73], 0")
    a(f"s_cbranch_scc1 {Lsk}")
    a("s_waitcnt lgkmcnt(0)")
    for i in range(8):
        a(f"v_add_u32 v1, v{48+i}, v12")
        a(f"buffer_store_short v{40+i}, v1, s[{SO}:{SO+3}], 0 offen")
    a(f"{Lsk}:")
```

```python
from common import *
from gemm import *
import math
FR_LDS = 163840
QBASE = 3 * 16384
KVS = int(os.environ.get("KVS", "4"))
FS = [int(x) for x in os.environ.get("FS", "9,11").split(",")]

def gen_front(a, name):
    kernel_begin(a, name)
    Lend = a.label("end")
    a(f"s_cmp_ge_u32 s2, 256")
    a(f"s_cbranch_scc1 {Lend}")
    stamp_begin(a)
    a("s_load_dwordx4 s[96:99], s[0:1], 0")
    a("s_load_dwordx4 s[56:59], s[0:1], 16")
    load_ptr(a, 100, "B_x")
    load_ptr(a, 14, "ws")
    S_W, S_RG, S_T = 42, 43, 64
    VL, V16 = 4, 5
    lane_wave(a, VL, S_W)
    S_X, S_J = 65, 66
    a(f"s_and_b32 s{S_X}, s2, 7")
    a(f"s_lshr_b32 s{S_J}, s2, 3")
    S_TM, S_TN, S_MB, S_HD = 67, 68, 69, 70
    a(f"s_lshl_b32 s{S_TM}, s{S_X}, 1")
    a(f"s_lshr_b32 s{S_T}, s{S_J}, 4")
    a(f"s_add_u32 s{S_TM}, s{S_TM}, s{S_T}")
    a(f"s_and_b32 s{S_TN}, s{S_J}, 15")
    a(f"s_and_b32 s{S_MB}, s{S_W}, 3")
    a(f"s_bfe_u32 s{S_HD}, s{S_W}, 0x10002")
    a(f"v_lshlrev_b32 v{V16}, 4, v{VL}")
    RS = [72, 73, 74, 75]; S_KK = 71
    pipe = Pipe(a, 4, 24576, RS)
    SXX, SWQ = 24, 28
    VX, VW = 40, 44
    S_XB, S_WB, S_LX, S_LWQ = 60, 61, 62, 63
    groups = [
        Group(SXX, S_XB, 7, S_LX, [(VX + p, p * 1024) for p in range(4)]),
        Group(SWQ, S_WB, 17, S_LWQ, [(VW + p, 16384 + p * 1024) for p in range(2)]),
    ]
    QB, QA, QF, QACC = 128, 133, 64, 96
    qfrags = [
        Frag('b128', lambda u: (u, 0), [QF + 8*u for u in range(4)]),
        Frag('tr', lambda u: (4, 16384 + (16*u) * 128, 16384 + (16*u + 4) * 128), [QF + 4 + 8*u for u in range(4)]),
    ]
    qph = Phase(16, S_KK, groups, qfrags, [(QACC, 1, 0)], list(range(QB, QB + 5)), list(range(QA, QA + 5)))
    Lcomp = a.label("comp")
    a(f"s_cmp_lt_u32 s{S_W}, 8")
    a(f"s_cbranch_scc1 {Lcomp}")
    for p in range(4):
        rm_voff(a, VX + p, VL, p & 1, pitch_log2=11)
        if p:
            a(f"v_add_u32 v{VX+p}, {p*8*2048}, v{VX+p}")
    kn_voff(a, VW, VL, 11)
    a(f"v_add_u32 v{VW+1}, {8*2048}, v{VW}")
    a(f"s_lshl_b32 s{S_XB}, s{S_TM}, 18")
    a(f"s_lshl_b32 s{S_T}, s{S_MB}, 16")
    a(f"s_add_u32 s{S_XB}, s{S_XB}, s{S_T}")
    a(f"s_lshl_b32 s{S_WB}, s{S_TN}, 7")
    a(f"s_lshl_b32 s{S_T}, s{S_MB}, 15")
    a(f"s_add_u32 s{S_WB}, s{S_WB}, s{S_T}")
    a(f"s_lshl_b32 s{S_LX}, s{S_MB}, 12")
    a(f"s_add_u32 s{S_LX}, s{S_LX}, {QBASE}")
    a(f"s_lshl_b32 s{S_LWQ}, s{S_MB}, 11")
    a(f"s_add_u32 s{S_LWQ}, s{S_LWQ}, {QBASE}")
    a(f"s_lshr_b32 s{S_KK}, s{S_J}, 4")
    a(f"s_lshl_b32 s{S_KK}, s{S_KK}, 3")
    a(f"s_add_u32 s{S_KK}, s{S_KK}, s{S_J}")
    a(f"s_and_b32 s{S_KK}, s{S_KK}, 15")
    if os.environ.get("NOROT"): a(f"s_mov_b32 s{S_KK}, 0")
    a("s_waitcnt lgkmcnt(0)")
    make_srd(a, SXX, 96, 4 << 20)
    make_srd(a, SWQ, 98, 2 << 20)
    a(f"s_mov_b32 s{pipe.S_SL}, 0")
    for _ in range(4): pipe.issue(qph)
    a("s_waitcnt vmcnt(18)")
    a("s_barrier")
    a("s_waitcnt vmcnt(12)")
    a("s_barrier")
    pipe.loader_loop(qph, 12, 6)
    pipe.loader_tail(6)
    a(f"s_branch {Lend}")
    a(f"{Lcomp}:")
    SX, SE, SB, SWS = 16, 20, 24, 32
    S_LB, S_KB = 40, 41
    XF, WF, ACC = 112, 12, 44
    VF, VFO, VFW, VA, VFP = 12, 138, 140, 142, 148
    S_U = 48
    a(f"s_lshl_b32 s{S_RG}, s{S_TM}, 2")
    a(f"s_add_u32 s{S_RG}, s{S_RG}, s{S_MB}")
    a(f"s_lshl_b32 s{S_RG}, s{S_RG}, 5")
    a(f"s_lshl_b32 s{S_T}, s{S_TN}, 1")
    a(f"s_add_u32 s{S_RG}, s{S_RG}, s{S_T}")
    a(f"s_add_u32 s{S_RG}, s{S_RG}, s{S_HD}")
    a(f"s_lshl_b32 s{S_RG}, s{S_RG}, 11")
    a(f"s_lshl_b32 s45, s{S_W}, 13")
    a(f"s_cmp_ge_u32 s{S_W}, 6")
    a(f"s_cselect_b32 s{S_LB}, {96*1024}, 0")
    a(f"s_add_u32 s{S_LB}, s{S_LB}, s45")
    a(f"s_lshl_b32 s46, s{S_X}, 4")
    a(f"s_lshr_b32 s{S_T}, s{S_J}, 1")
    a(f"s_add_u32 s46, s46, s{S_T}")
    a(f"s_lshl_b32 s47, s46, 15")
    a(f"s_lshl_b32 s{S_T}, s{S_W}, 8")
    a(f"s_add_u32 s47, s47, s{S_T}")
    a(f"v_and_b32 v1, 15, v{VL}")
    a(f"v_lshrrev_b32 v2, 4, v{VL}")
    a(f"v_lshlrev_b32 v3, 4, v2")
    a(f"v_lshl_add_u32 v10, v1, 11, v3")
    a(f"v_and_b32 v3, 1, v2")
    a(f"v_lshl_add_u32 v3, v3, 5, v1")
    a(f"v_lshlrev_b32 v3, 4, v3")
    a(f"v_lshrrev_b32 v8, 1, v2")
    a(f"v_lshl_add_u32 v8, v8, 3, v3")
    a(f"v_bfe_u32 v1, v{VL}, 2, 2")
    a(f"v_lshl_add_u32 v1, v2, 3, v1")
    a(f"v_lshlrev_b32 v1, 6, v1")
    a(f"v_and_b32 v2, 3, v{VL}")
    a(f"v_lshl_add_u32 v1, v2, 3, v1")
    a(f"v_add_u32 v9, s{S_LB}, v1")
    a(f"s_lshr_b32 s{S_KB}, s46, 1")
    a(f"s_lshl_b32 s{S_KB}, s{S_KB}, 12")
    a(f"s_add_u32 s{S_KB}, s{S_KB}, {WS_KV}")
    a(f"s_and_b32 s46, s46, 1")
    a(f"s_and_b32 s49, s{S_W}, 1")
    a(f"s_bitcmp1_b32 s{S_J}, 0")
    a(f"s_cselect_b32 s50, s46, s49")
    a(f"s_cselect_b32 s51, s49, s46")
    a(f"s_cselect_b32 s{S_T}, 2048, 0")
    a(f"s_add_u32 s{S_KB}, s{S_KB}, s{S_T}")
    a(f"s_lshl_b32 s50, s50, 10")
    a(f"s_lshl_b32 s51, s51, 8")
    a(f"s_add_u32 s{S_KB}, s{S_KB}, s50")
    a(f"s_add_u32 s{S_KB}, s{S_KB}, s51")
    a("s_waitcnt lgkmcnt(0)")
    make_srd(a, SX, 96, 4 << 20)
    a(f"s_bitcmp1_b32 s{S_J}, 0")
    a(f"s_cselect_b32 s{SE}, s58, s56")
    a(f"s_cselect_b32 s{SE+1}, s59, s57")
    a(f"s_mov_b32 s{SE+2}, 65536")
    a(f"s_mov_b32 s{SE+3}, 0x20000")
    make_srd(a, SB, 100, 4 << 20)
    make_srd(a, SWS, 14, WS_SIZE)
    a(f"s_sleep {int(os.environ.get('KVD', '8'))}")
    for p in range(8):
        a(f"s_add_u32 m0, s{S_LB}, {p*1024}")
        a(f"s_add_u32 s{S_T}, s45, {p*1024}")
        a(f"buffer_load_dwordx4 v{V16}, s[{SE}:{SE+3}], s{S_T} offen lds")
    for ks in range(4):
        a(f"buffer_load_dwordx4 {vr(XF+4*ks,4)}, v10, s[{SX}:{SX+3}], s47 offen offset:{ks*64}")
    a(f"s_lshr_b32 s50, s{S_W}, 1")
    for sl in range(3):
        d = 44 + sl
        a(f"s_add_u32 s51, s2, {256*sl}")
        a(f"s_sub_u32 s55, 2048, s51")
        a(f"s_and_b32 s55, s55, 2047")
        a(f"s_sub_u32 s56, 1024, s51")
        a(f"s_add_u32 s57, 1024, s51")
        a(f"s_cmp_eq_u32 s50, 1")
        a(f"s_cselect_b32 s{d}, s55, s51")
        a(f"s_cmp_eq_u32 s50, 2")
        a(f"s_cselect_b32 s{d}, s56, s{d}")
        a(f"s_cmp_eq_u32 s50, 3")
        a(f"s_cselect_b32 s{d}, s57, s{d}")
        a(f"s_lshl_b32 s{d}, s{d}, 1")
        a(f"s_add_u32 s{d}, s{d}, s49")
        a(f"s_lshl_b32 s{d}, s{d}, 10")
    a(f"s_cmp_lg_u32 s2, 0")
    a(f"s_cselect_b32 s46, 0x40000000, s46")
    a(f"s_lshl_b32 s47, s50, 13")
    a(f"s_lshl_b32 s49, s49, 10")
    a(f"s_add_u32 s47, s47, s49")
    for j in range(2):
        a(f"s_add_u32 s54, s{S_W}, {8*j}")
        a(f"s_mul_i32 s55, s54, 52")
        a(f"s_lshr_b32 s55, s55, 8")
        a(f"s_mul_i32 s56, s55, 5")
        a(f"s_sub_u32 s56, s54, s56")
        a(f"s_lshl_b32 s56, s56, 6")
        a(f"v_add_u32 v10, s56, v{VL}")
        a(f"s_lshl_b32 s54, s55, 8")
        a(f"s_add_u32 s54, s54, s2")
        a(f"s_mul_i32 s{S_U+j}, s54, {F_PITCH}")
        a(f"s_add_u32 s{S_U+j}, s{S_U+j}, {WS_F}")
        a(f"s_cmp_ge_u32 s54, {F_ROWS}")
        a(f"s_cselect_b32 s{S_U+j}, 0, s{S_U+j}")
        a(f"s_mov_b32 s57, 1.0")
        a(f"s_and_b32 s56, s54, 511")
        a(f"s_cmp_eq_u32 s56, 0")
        a(f"s_cselect_b32 s57, 0.5, s57")
        a(f"s_lshl_b32 s55, s55, 11")
        a(f"s_add_u32 s55, s55, 2048")
        a(f"v_lshlrev_b32 v{VFO+j}, 1, v10")
        a(f"v_sub_u32 v6, 2048, v{VFO+j}")
        a(f"v_and_b32 v6, 2047, v6")
        a(f"v_sub_u32 v7, 1024, v{VFO+j}")
        a(f"v_add_u32 v{VA+3*j}, s55, v{VFO+j}")
        a(f"v_add_u32 v{VA+3*j+1}, s55, v6")
        a(f"v_add_u32 v{VA+3*j+2}, s55, v7")
        a(f"v_mov_b32 v{VFW+j}, s57")
        a(f"v_and_b32 v1, 255, v10")
        a(f"v_cmp_eq_u32 vcc, 0, v1")
        a(f"v_mul_f32 v1, 0.5, v{VFW+j}")
        a("s_nop 1")
        a(f"v_cndmask_b32 v{VFW+j}, v{VFW+j}, v1, vcc")
        a(f"v_cmp_ge_u32 vcc, 256, v10")
        a(f"s_cmp_le_u32 s54, 512")
        a(f"s_cselect_b64 s[{50+2*j}:{51+2*j}], vcc, 0")
    def kv_part():
        a("s_waitcnt vmcnt(0) lgkmcnt(0)")
        for ks in range(4):
            for c in range(2):
                r = WF + 8*ks + 4*c
                a(f"ds_read_b64_tr_b16 {vr(r,2)}, v9 offset:{ks*2048 + c*32}")
                a(f"ds_read_b64_tr_b16 {vr(r+2,2)}, v9 offset:{ks*2048 + c*32 + 256}")
            if ks == 1: a("s_waitcnt lgkmcnt(4)")
        Lv, Lj = a.label("kvv"), a.label("kvj")
        a("s_waitcnt lgkmcnt(0)")
        a(f"s_bitcmp1_b32 s{S_J}, 0")
        a(f"s_cbranch_scc1 {Lv}")
        for ks in range(4):
            for c in range(2):
                a(mfma16(ACC+4*c, WF+8*ks+4*c, XF+4*ks, "0" if ks == 0 else None))
        a(f"s_branch {Lj}")
        a(f"{Lv}:")
        for ks in range(4):
            for c in range(2):
                a(mfma16(ACC+4*c, XF+4*ks, WF+8*ks+4*c, "0" if ks == 0 else None))
        a(f"{Lj}:")
        a(f"v_add_u32 v9, s{S_LB}, v{V16}")
        a("s_nop 15")
        for c in range(2):
            a(f"ds_write_b128 v9, {vr(ACC+4*c,4)} offset:{c*1024}")
        a("s_waitcnt lgkmcnt(0)")
    def kv_reduce():
        for sl in range(3):
            a(f"s_add_u32 m0, s47, {2048 + sl*2048}")
            a("s_nop 0")
            a(f"buffer_load_dwordx4 v{V16}, s[{SB}:{SB+3}], s{44+sl} offen lds")
        Lnr = a.label("kvn")
        a(f"s_cmp_lt_u32 s{S_W}, 6")
        a(f"s_cbranch_scc1 {Lnr}")
        a(f"s_and_b32 s{S_T}, s{S_W}, 1")
        a(f"s_lshl_b32 s{S_T}, s{S_T}, 10")
        a(f"v_add_u32 v9, s{S_T}, v{V16}")
        a(f"v_add_u32 v10, {144*1024}, v9")
        a("s_waitcnt lgkmcnt(0)")
        B = 12
        for w in range(8):
            if w < 6: a(f"ds_read_b128 {vr(B+4*w,4)}, v9 offset:{w*8192}")
            else: a(f"ds_read_b128 {vr(B+4*w,4)}, v10 offset:{(w-6)*8192}")
        for w in range(1, 8):
            a(f"s_waitcnt lgkmcnt({7-w})")
            for r in range(4):
                a(f"v_add_f32 v{B+r}, v{B+r}, v{B+4*w+r}")
        a(f"v_cvt_pk_bf16_f32 v44, v{B}, v{B+1}")
        a(f"v_cvt_pk_bf16_f32 v45, v{B+2}, v{B+3}")
        a(f"buffer_store_dwordx2 v[44:45], v8, s[{SWS}:{SWS+3}], s{S_KB} offen")
        a(f"{Lnr}:")
        for r in range(32):
            a(f"v_mov_b32 v{VF+r}, 0")
    def fold(j):
        Lf = a.label("nfold")
        a(f"s_cmp_eq_u32 s{S_U+j}, 0")
        a(f"s_cbranch_scc1 {Lf}")
        b = VF + 16*j
        X = lambda r, c: b + 4*r + c
        a("s_waitcnt lgkmcnt(0)")
        a(f"s_mov_b64 exec, s[{50+2*j}:{51+2*j}]")
        for r in range(4):
            a(f"ds_read_u16_d16_hi v{X(r,0)}, v{VA+3*j} offset:{r*8192}")
            a(f"ds_read_u16_d16_hi v{X(r,1)}, v{VA+3*j+1} offset:{r*8192}")
            a(f"ds_read_u16_d16_hi v{X(r,2)}, v{VA+3*j+2} offset:{r*8192}")
            a(f"ds_read_u16_d16_hi v{X(r,3)}, v{VA+3*j} offset:{r*8192+1024}")
            if r == 2: a("s_waitcnt lgkmcnt(8)")
        a("s_mov_b64 exec, -1")
        a("s_waitcnt lgkmcnt(0)")
        for c in range(4):
            a(f"v_add_f32 v1, v{X(0,c)}, v{X(1,c)}")
            a(f"v_sub_f32 v2, v{X(0,c)}, v{X(1,c)}")
            a(f"v_add_f32 v3, v{X(2,c)}, v{X(3,c)}")
            a(f"v_sub_f32 v6, v{X(2,c)}, v{X(3,c)}")
            a(f"v_add_f32 v{X(0,c)}, v1, v3")
            a(f"v_sub_f32 v{X(1,c)}, v1, v3")
            a(f"v_sub_f32 v{X(2,c)}, v2, v6")
            a(f"v_add_f32 v{X(3,c)}, v2, v6")
        for r in range(4):
            c0, c1, c2, c3 = X(r,0), X(r,1), X(r,2), X(r,3)
            if r < 2:
                a(f"v_add_f32 v1, v{c0}, v{c1}")
                a(f"v_add_f32 v2, v{c2}, v{c3}")
                a(f"v_add_f32 v3, v1, v2")
                a(f"v_sub_f32 v6, v1, v2")
            else:
                a(f"v_sub_f32 v1, v{c0}, v{c1}")
                a(f"v_sub_f32 v2, v{c2}, v{c3}")
                a(f"v_sub_f32 v3, v1, v2")
                a(f"v_add_f32 v6, v1, v2")
            a(f"v_mul_f32 v3, v3, v{VFW+j}")
            a(f"v_mul_f32 v6, v6, v{VFW+j}")
            a(f"v_cvt_pk_bf16_f32 v{VFP+4*j+r}, v3, v6")
            a(f"s_add_u32 s54, s{S_U+j}, {(2*r)*F_CLS}")
            a(f"s_add_u32 s55, s{S_U+j}, {(2*r+1)*F_CLS}")
            a(f"buffer_store_short v{VFP+4*j+r}, v{VFO+j}, s[{SWS}:{SWS+3}], s54 offen")
            a(f"buffer_store_short_d16_hi v{VFP+4*j+r}, v{VFO+j}, s[{SWS}:{SWS+3}], s55 offen")
        a(f"{Lf}:")
    def at(step, fn):
        L = a.label("hk")
        a(f"s_cmp_lg_u32 s{pipe.S_CNT}, {step}")
        a(f"s_cbranch_scc1 {L}")
        fn()
        a(f"{L}:")
    def pre_bar():
        at(FS[0], lambda: a("s_waitcnt vmcnt(0)"))
    def post_bar():
        at(KVS, kv_part)
        at(KVS + 1, kv_reduce)
        at(FS[0], lambda: fold(0))
        at(FS[1], lambda: fold(1))
    rm_frag_addr(a, 6, VL)
    a(f"s_lshl_b32 s{S_T}, s{S_MB}, 12")
    a(f"s_add_u32 s{S_T}, s{S_T}, {QBASE}")
    a(f"v_add_u32 v6, s{S_T}, v6")
    for u in range(4):
        a(f"v_xor_b32 v{QB+u}, {u*32}, v6")
    kn_frag_addr(a, QB + 4, VL, S_HD, False)
    a(f"v_add_u32 v{QB+4}, {QBASE}, v{QB+4}")
    pipe.compute(qph, True, pre_bar=pre_bar, post_bar=post_bar)
    mark(a, 3)
    cq = (32 ** -0.5) * math.log2(math.e)
    a(f"s_mov_b32 s{S_T}, {hex(f32bits(cq))}")
    a("s_nop 9")
    pack16(a, 12, QACC, S_T)
    a(f"s_add_u32 s{S_RG}, s{S_RG}, {WS_Q}")
    a(f"buffer_store_dwordx4 v[12:15], v{V16}, s[{SWS}:{SWS+3}], s{S_RG} offen")
    a(f"buffer_store_dwordx4 v[16:19], v{V16}, s[{SWS}:{SWS+3}], s{S_RG} offen offset:1024")
    stamp_end(a)
    dump_marks(a)
    a(f"{Lend}:")
    a("s_endpgm")
    kernel_end(a, name, 168, sgpr=102)
```

```python
from common import *
from gemm import *
from k_qkv import krot
from k_fnet import sdiv, s2_epilogue, s2_epilogue2

OP_SLOTS = 5
OP_SLOT = 32768
OP_LDS = OP_SLOTS * OP_SLOT
S2_UNITS = 162

def gen_out(a, name):
    kernel_begin(a, name)
    Lend = a.label("end"); Lcomp = a.label("comp")
    a(f"s_cmp_ge_u32 s2, 256")
    a(f"s_cbranch_scc1 {Lend}")
    stamp_begin(a)
    load_ptr(a, 6, "wo"); load_ptr(a, 12, "out"); load_ptr(a, 14, "ws")
    a("s_load_dwordx4 s[8:11], s[0:1], 48")
    S_TM, S_TN, S_W, S_WM, S_WN = 40, 41, 42, 43, 44
    a(f"s_and_b32 s46, s2, 7")
    a(f"s_lshr_b32 s45, s2, 3")
    a(f"s_lshl_b32 s{S_TM}, s46, 1")
    a(f"s_lshr_b32 s47, s45, 4")
    a(f"s_add_u32 s{S_TM}, s{S_TM}, s47")
    a(f"s_and_b32 s{S_TN}, s45, 15")
    VL = 4
    lane_wave(a, VL, S_W)
    RS = [64, 65, 66, 67]; S_KK, S_KK2 = 68, 69
    S_T = RS[2]
    pipe = Pipe(a, OP_SLOTS, OP_SLOT, RS)
    VX, VW = 8, 12
    VY = 152
    S_XB, S_WB, S_LX, S_LW = 58, 59, 61, 62
    SD, SW, SO, SWS = 16, 20, 28, 32
    S_CA, S_TT, S_EB = 48, 49, 50
    S_AB, S_GB = 53, 54
    VW8 = 136
    groups = [
        Group(SW, S_WB, 19, S_LW, [(VW8 + p, p * 1024) for p in range(8)]),
    ]
    VB, VA = 16, 26
    FR = 40
    ACC = 104
    ph1 = Phase(4, S_KK, groups, [], [], [VB, VB + 1], [VA, VA + 1])
    groups2 = [
        Group(SD, S_AB, 7, S_LX, [(VY + p, p * 1024) for p in range(4)]),
        Group(SWS, S_GB, 12, S_LX, [(VX + p, 16384 + p * 1024) for p in range(4)]),
    ]
    frags2 = [
        Frag('b128', lambda u: (u, 0), [FR + 16*u for u in range(4)]),
        Frag('b128', lambda u: (u, 8192), [FR + 4 + 16*u for u in range(4)]),
        Frag('b128', lambda u: (4, 16384 + u * 1024), [FR + 8 + 16*u for u in range(4)]),
        Frag('b128', lambda u: (4, 16384 + 8192 + u * 1024), [FR + 12 + 16*u for u in range(4)]),
    ]
    mf2 = [(ACC, 0, 2), (ACC + 16, 1, 3)]
    VB2 = 18
    ph2 = Phase(9, S_KK2, groups2, frags2, mf2, list(range(VB2, VB2 + 5)), list(range(VA, VA + 5)))
    a(f"s_cmp_lt_u32 s{S_W}, 4")
    a(f"s_cselect_b32 s47, 1, 0")
    a(f"s_and_b32 s{S_W}, s{S_W}, 3")
    a(f"s_lshr_b32 s{S_WM}, s{S_W}, 1")
    a(f"s_and_b32 s{S_WN}, s{S_W}, 1")
    a(f"v_lshlrev_b32 v{VX}, 4, v{VL}")
    S_OK = 60
    a(f"s_lshr_b32 s{S_CA}, s46, 2")
    a(f"s_and_b32 s51, s46, 1")
    a(f"s_sub_u32 s52, 5, s51")
    a(f"s_mov_b32 s{S_T}, {hex((1<<32)//4+1)}")
    a(f"s_cmp_eq_u32 s51, 0")
    a(f"s_cselect_b32 s{S_T}, {hex((1<<32)//5+1)}, s{S_T}")
    a(f"s_mul_hi_u32 s{S_TT}, s45, s{S_T}")
    a(f"s_mul_i32 s{S_T}, s{S_TT}, s52")
    a(f"s_sub_u32 s{S_EB}, s45, s{S_T}")
    a(f"s_mul_i32 s51, s51, 5")
    a(f"s_add_u32 s{S_EB}, s{S_EB}, s51")
    a(f"s_bfe_u32 s51, s46, 0x10001")
    a(f"s_sub_u32 s52, 5, s51")
    a(f"s_cmp_lt_u32 s{S_TT}, s52")
    a(f"s_cselect_b32 s{S_OK}, 1, 0")
    a(f"s_mul_i32 s51, s51, 5")
    a(f"s_add_u32 s{S_TT}, s{S_TT}, s51")
    a(f"s_cmp_lg_u32 s47, 0")
    a(f"s_cbranch_scc1 {Lcomp}")
    a(f"s_mov_b32 s{S_KK}, 0")
    for p in range(1, 4):
        a(f"v_add_u32 v{VX+p}, {p*1024}, v{VX}")
    kn_voff(a, VW8, VL, 11)
    for p in range(1, 8):
        a(f"v_add_u32 v{VW8+p}, {p*8*2048}, v{VW8}")
    a(f"s_lshl_b32 s{S_WB}, s{S_TN}, 7")
    a(f"s_lshl_b32 s{S_T}, s{S_W}, 17")
    a(f"s_add_u32 s{S_WB}, s{S_WB}, s{S_T}")
    a(f"s_lshl_b32 s{S_LX}, s{S_W}, 12")
    a(f"s_lshl_b32 s{S_LW}, s{S_W}, 13")
    a("s_waitcnt lgkmcnt(0)")
    make_srd(a, SW, 6, 2 << 20)
    make_srd(a, SWS, 14, WS_SIZE)
    pipe.loader_prologue(ph1)
    a(f"s_cmp_lt_u32 s{S_W}, 2")
    a(f"s_cselect_b32 s{SD}, s8, s10")
    a(f"s_cselect_b32 s{SD+1}, s9, s11")
    a(f"s_mov_b32 s{SD+2}, {8<<20}")
    a(f"s_mov_b32 s{SD+3}, 0x20000")
    for p in range(4):
        rm_voff(a, VY + p, VL, p & 1, pitch_log2=13)
        if p:
            a(f"v_add_u32 v{VY+p}, {p*8*8192}, v{VY+p}")
    a(f"s_lshl_b32 s{S_AB}, s{S_TT}, 1")
    a(f"s_add_u32 s{S_AB}, s{S_AB}, s{S_WN}")
    a(f"s_lshl_b32 s{S_AB}, s{S_AB}, 18")
    a(f"s_lshl_b32 s{S_T}, s{S_CA}, 12")
    a(f"s_add_u32 s{S_AB}, s{S_AB}, s{S_T}")
    a(f"s_lshl_b32 s{S_GB}, s{S_WM}, 2")
    a(f"s_lshl_b32 s{S_T}, s{S_CA}, 1")
    a(f"s_add_u32 s{S_GB}, s{S_GB}, s{S_T}")
    a(f"s_add_u32 s{S_GB}, s{S_GB}, s{S_WN}")
    a(f"s_mul_i32 s{S_GB}, s{S_GB}, {G_CLS}")
    a(f"s_mul_i32 s{S_T}, s{S_EB}, {G_EB}")
    a(f"s_add_u32 s{S_GB}, s{S_GB}, s{S_T}")
    a(f"s_add_u32 s{S_GB}, s{S_GB}, {WS_G}")
    a(f"s_add_u32 s{S_KK2}, s{S_EB}, s{S_TT}")
    a(f"s_sub_u32 s{S_T}, s{S_KK2}, 9")
    a(f"s_cmp_ge_u32 s{S_KK2}, 9")
    a(f"s_cselect_b32 s{S_KK2}, s{S_T}, s{S_KK2}")
    Lt = a.label("ltail")
    a("s_waitcnt vmcnt(8)")
    a("s_barrier")
    pipe.issue(ph1)
    a("s_waitcnt vmcnt(8)")
    a("s_barrier")
    pipe.issue(ph1)
    a(f"s_cmp_eq_u32 s{S_OK}, 0")
    a(f"s_cbranch_scc1 {Lt}")
    pipe.issue(ph2)
    for j in range(2, 5):
        a("s_waitcnt vmcnt(16)")
        a("s_barrier")
        pipe.issue(ph2)
    a("s_barrier")
    pipe.loader_loop(ph2, 5, 16)
    pipe.loader_tail(8)
    a(f"s_branch {Lend}")
    a(f"{Lt}:")
    a("s_waitcnt vmcnt(8)")
    a("s_barrier")
    a("s_waitcnt vmcnt(0)")
    a("s_barrier")
    a(f"s_branch {Lend}")
    a(f"{Lcomp}:")
    a(f"s_mov_b32 s56, 0")
    kn_frag_addr(a, VB, VL, 56, True)
    a(f"v_xor_b32 v{VB+1}, 64, v{VB}")
    rm_frag_addr(a, 5, VL)
    a(f"s_lshl_b32 s{S_T}, s{S_WM}, 12")
    a(f"v_add_u32 v5, s{S_T}, v5")
    for u in range(4):
        a(f"v_xor_b32 v{VB2+u}, {u*32}, v5")
    a(f"s_lshl_b32 s{S_T}, s{S_WN}, 12")
    a(f"v_add_u32 v{VB2+4}, s{S_T}, v{VX}")
    a(f"s_cmp_eq_u32 s{S_OK}, 0")
    a(f"s_cselect_b32 s55, 3, 99")
    a(f"s_lshl_b32 s{S_XB}, s{S_TM}, 2")
    a(f"s_add_u32 s{S_XB}, s{S_XB}, s{S_W}")
    a(f"s_lshl_b32 s{S_XB}, s{S_XB}, 16")
    a(f"s_add_u32 s{S_XB}, s{S_XB}, {WS_O}")
    a("s_waitcnt lgkmcnt(0)")
    make_srd(a, SO, 12, 8 << 20)
    make_srd(a, SWS, 14, WS_O + (4 << 20))
    a(f"s_add_u32 s{SWS+2}, s{S_XB}, 65536")
    OF = 136
    NS = 16
    PD = int(os.environ.get('OPD', '11'))
    WF = FR
    def oload(i):
        a(f"buffer_load_dwordx4 {vr(OF+4*(i%NS),4)}, v{VX}, s[{SWS}:{SWS+3}], s{S_XB} offen offset:{(i%4)*1024}")
    def wreads(i):
        r = WF + 8*(i % 4)
        out = []
        for nb in range(2):
            for j in range(2):
                out.append(f"ds_read_b64_tr_b16 {vr(r+4*nb+2*j,2)}, v{VA+nb} offset:{(16*i+8*j)*128}")
        return out
    for i in range(PD):
        oload(i)
        if i % 4 == 3: a(f"s_add_u32 s{S_XB}, s{S_XB}, 4096")
    for r in range(32): a(f"v_mov_b32 v{ACC+r}, 0")
    a(f"s_mov_b32 s{RS[0]}, 0")
    pipe.set_addr(ph1)
    a(f"s_mov_b32 s{RS[1]}, 0")
    a("s_barrier")
    mark(a, 0)
    for i in range(3):
        for x in wreads(i): a(x)
    L, Lnb = a.label("ol"), a.label("onb")
    a(f"{L}:")
    pipe.adv_slot()
    a(f"s_cmp_eq_u32 s{RS[1]}, s55")
    a(f"s_cbranch_scc1 {Lnb}")
    a("s_barrier")
    a(f"{Lnb}:")
    for i in range(16):
        if i == 13: pipe.set_addr(ph1)
        rl = wreads((i + 3) & 15)
        a(f"s_waitcnt vmcnt({PD-1}) lgkmcnt(8)")
        a(mfma32(ACC, WF + 8*(i%4), OF + 4*(i%NS)))
        a(rl[0]); a(rl[1])
        oload(i + PD)
        if (i + PD) % 4 == 3: a(f"s_add_u32 s{S_XB}, s{S_XB}, 4096")
        a(mfma32(ACC + 16, WF + 8*(i%4) + 4, OF + 4*(i%NS)))
        a(rl[2]); a(rl[3])
    a(f"s_add_u32 s{RS[1]}, s{RS[1]}, 1")
    a(f"s_cmp_lt_u32 s{RS[1]}, 4")
    a(f"s_cbranch_scc1 {L}")
    a("s_waitcnt vmcnt(0) lgkmcnt(0)")
    mark(a, 1)
    a("s_barrier")
    EB = 3 * OP_SLOT
    a(f"v_and_b32 v1, 31, v{VL}")
    a(f"v_mul_u32_u24 v5, 144, v1")
    a(f"v_lshrrev_b32 v1, 5, v{VL}")
    a(f"v_lshl_add_u32 v5, v1, 4, v5")
    a(f"s_mul_i32 s56, s{S_W}, {32*144}")
    a(f"s_add_u32 s56, s56, {EB}")
    a(f"v_add_u32 v5, s56, v5")
    a(f"v_lshrrev_b32 v1, 3, v{VL}")
    a(f"v_and_b32 v2, 7, v{VL}")
    a(f"v_mul_u32_u24 v6, 144, v1")
    a(f"v_lshl_add_u32 v6, v2, 4, v6")
    a(f"v_add_u32 v6, s56, v6")
    a(f"v_lshlrev_b32 v7, 12, v1")
    a(f"v_lshl_add_u32 v7, v2, 4, v7")
    a(f"s_lshl_b32 s56, s{S_TM}, 2")
    a(f"s_add_u32 s56, s56, s{S_W}")
    a(f"s_lshl_b32 s56, s56, 17")
    a(f"s_lshl_b32 s57, s{S_TN}, 7")
    a(f"s_add_u32 s56, s56, s57")
    PK = 136
    for i in range(2):
        pack16(a, PK + 8*i, ACC + 16*i)
        swap_natural(a, PK + 8*i)
        a(f"ds_write_b128 v5, {vr(PK+8*i,4)} offset:{64*i}")
        a(f"ds_write_b128 v5, {vr(PK+8*i+4,4)} offset:{64*i+32}")
    a("s_waitcnt lgkmcnt(0)")
    for i in range(4):
        a(f"ds_read_b128 {vr(PK+16+4*i,4)}, v6 offset:{i*8*144}")
    for i in range(4):
        a(f"s_add_u32 s57, s56, {i*8*4096}")
        a(f"s_waitcnt lgkmcnt({3-i})")
        a(f"buffer_store_dwordx4 {vr(PK+16+4*i,4)}, v7, s[{SO}:{SO+3}], s57 offen")
    mark(a, 2)
    Lfin = a.label("fin")
    a(f"s_cmp_eq_u32 s{S_OK}, 0")
    a(f"s_cbranch_scc1 {Lfin}")
    pipe.compute(ph2, False)
    mark(a, 3)
    a("s_nop 7")
    s2_epilogue2(a, VL, ACC, S_CA, S_TT, S_EB, S_W, S_WM, S_WN, SO, S_T)
    a(f"{Lfin}:")
    stamp_end(a)
    dump_marks(a)
    a(f"{Lend}:")
    a("s_endpgm")
    kernel_end(a, name, 200)
```

```python
from common import *
from gemm import *

FB = 65536
PRE_LDS = FB + 3 * 8192

def gen_pre(a, name):
    kernel_begin(a, name)
    Lend = a.label("end")
    a(f"s_cmp_ge_u32 s2, 256")
    a(f"s_cbranch_scc1 {Lend}")
    stamp_begin(a)
    a("s_load_dwordx8 s[4:11], s[0:1], 0")
    load_ptr(a, 12, "B_x"); load_ptr(a, 14, "ws")
    S_X, S_J, S_W, S_T = 40, 41, 42, 43
    VL, V16 = 4, 5
    lane_wave(a, VL, S_W)
    a(f"s_and_b32 s{S_X}, s2, 7")
    a(f"s_lshr_b32 s{S_J}, s2, 3")
    SX, SW, SE, SB, SWS = 16, 20, 24, 28, 32
    S_LB, S_KB, S_KB2 = 44, 45, 46
    XF, WF, ACC = 64, 80, 112
    a(f"v_lshlrev_b32 v{V16}, 4, v{VL}")
    a(f"s_lshl_b32 s{S_LB}, s{S_W}, 13")
    a(f"s_lshl_b32 s48, s{S_X}, 4")
    a(f"s_lshr_b32 s{S_T}, s{S_J}, 1")
    a(f"s_add_u32 s48, s48, s{S_T}")
    a(f"s_lshl_b32 s47, s48, 15")
    a(f"s_lshl_b32 s{S_T}, s{S_W}, 8")
    a(f"s_add_u32 s47, s47, s{S_T}")
    a(f"v_and_b32 v1, 15, v{VL}")
    a(f"v_lshrrev_b32 v2, 4, v{VL}")
    a(f"v_lshlrev_b32 v3, 4, v2")
    a(f"v_lshl_add_u32 v10, v1, 11, v3")
    a(f"s_lshr_b32 s50, s{S_W}, 1")
    for sl in range(3):
        d = 52 + sl
        a(f"s_add_u32 s51, s2, {256*sl}")
        if sl == 2:
            a(f"s_cmp_gt_u32 s51, 512")
            a(f"s_cselect_b32 s51, 0, s51")
        a(f"s_sub_u32 s55, 2048, s51")
        a(f"s_and_b32 s55, s55, 2047")
        a(f"s_sub_u32 s56, 1024, s51")
        a(f"s_add_u32 s57, 1024, s51")
        a(f"s_cmp_eq_u32 s50, 1")
        a(f"s_cselect_b32 s{d}, s55, s51")
        a(f"s_cmp_eq_u32 s50, 2")
        a(f"s_cselect_b32 s{d}, s56, s{d}")
        a(f"s_cmp_eq_u32 s50, 3")
        a(f"s_cselect_b32 s{d}, s57, s{d}")
        a(f"s_lshl_b32 s{d}, s{d}, 1")
        a(f"s_and_b32 s55, s{S_W}, 1")
        a(f"s_add_u32 s{d}, s{d}, s55")
        a(f"s_lshl_b32 s{d}, s{d}, 10")
    a(f"s_cmp_lg_u32 s2, 0")
    a(f"s_cselect_b32 s54, 0x40000000, s54")
    a(f"s_lshl_b32 s55, s{S_W}, 10")
    a("s_waitcnt lgkmcnt(0)")
    make_srd(a, SX, 4, 4 << 20)
    a(f"s_bitcmp1_b32 s{S_J}, 0")
    a(f"s_cselect_b32 s{SE}, s10, s8")
    a(f"s_cselect_b32 s{SE+1}, s11, s9")
    a(f"s_mov_b32 s{SE+2}, 65536")
    a(f"s_mov_b32 s{SE+3}, 0x20000")
    for ks in range(4):
        a(f"buffer_load_dwordx4 {vr(XF+4*ks,4)}, v10, s[{SX}:{SX+3}], s47 offen offset:{ks*64}")
    for p in range(8):
        a(f"s_add_u32 m0, s{S_LB}, {p*1024}")
        a(f"s_add_u32 s{S_T}, s{S_LB}, {p*1024}")
        a(f"buffer_load_dwordx4 v{V16}, s[{SE}:{SE+3}], s{S_T} offen lds")
    make_srd(a, SB, 12, 4 << 20)
    for sl in range(3):
        a(f"s_add_u32 m0, s55, {FB + sl*8192}")
        a("s_nop 0")
        a(f"buffer_load_dwordx4 v{V16}, s[{SB}:{SB+3}], s{52+sl} offen lds")
    make_srd(a, SW, 6, 2 << 20)
    make_srd(a, SWS, 14, WS_SIZE)
    PF = int(os.environ.get("PF", "1"))
    if PF == 2:
        a("s_barrier")
        a(f"s_lshl_b32 s49, s{S_J}, 16")
        a(f"s_add_u32 s49, s49, s{S_LB}")
        a(f"v_lshlrev_b32 v3, 6, v{VL}")
        a(f"buffer_load_dword v60, v3, s[{SW}:{SW+3}], s49 offen")
        a(f"s_add_u32 s49, s49, 4096")
        a(f"buffer_load_dword v61, v3, s[{SW}:{SW+3}], s49 offen")
        NPF = 2
    elif PF == 1:
        a(f"s_lshl_b32 s49, s2, 13")
        a(f"s_add_u32 s49, s49, s55")
        a(f"buffer_load_dwordx4 v[60:63], v{V16}, s[{SW}:{SW+3}], s49 offen")
        NPF = 1
    elif PF == 3:
        a(f"s_lshl_b32 s49, s2, 13")
        a(f"s_add_u32 s49, s49, s55")
        a(f"buffer_load_dwordx4 v[60:63], v{V16}, s[{SW}:{SW+3}], s49 offen")
        a(f"s_lshl_b32 s49, s{S_J}, 14")
        a(f"s_lshl_b32 s{S_T}, s{S_W}, 11")
        a(f"s_add_u32 s49, s49, s{S_T}")
        a(f"v_and_b32 v3, 31, v{VL}")
        a(f"v_lshlrev_b32 v3, 6, v3")
        a(f"buffer_load_dword v59, v3, s[{SW}:{SW+3}], s49 offen")
        NPF = 2
    elif PF >= 4:
        a(f"s_lshr_b32 s49, s{S_J}, 4")
        a(f"s_lshl_b32 s49, s49, 3")
        a(f"s_add_u32 s49, s49, s{S_J}")
        a(f"s_lshl_b32 s49, s49, 1")
        a(f"s_add_u32 s49, s49, s{S_W}")
        a(f"v_lshrrev_b32 v3, 1, v{VL}")
        a(f"v_and_b32 v6, 1, v{VL}")
        a(f"v_lshlrev_b32 v6, 6, v6")
        a(f"v_lshl_add_u32 v3, v3, 11, v6")
        a(f"s_and_b32 s{S_T}, s{S_J}, 15")
        a(f"s_lshl_b32 s{S_T}, s{S_T}, 7")
        NPF = 0
        for i in range(2 if PF >= 6 else 1):
            a(f"s_and_b32 s56, s49, 31")
            a(f"s_lshl_b32 s56, s56, 16")
            a(f"s_add_u32 s56, s56, s{S_T}")
            a(f"buffer_load_dword v{58+i}, v3, s[{SW}:{SW+3}], s56 offen")
            a(f"s_add_u32 s49, s49, 8")
            NPF += 1
        if PF == 5:
            a(f"s_lshl_b32 s49, s2, 13")
            a(f"s_add_u32 s49, s49, s55")
            a(f"buffer_load_dwordx4 v[60:63], v{V16}, s[{SW}:{SW+3}], s49 offen")
            NPF += 1
    else:
        NPF = 0
    a(f"v_and_b32 v3, 1, v2")
    a(f"v_lshl_add_u32 v3, v3, 5, v1")
    a(f"v_lshlrev_b32 v3, 4, v3")
    a(f"v_lshrrev_b32 v8, 1, v2")
    a(f"v_lshl_add_u32 v8, v8, 3, v3")
    a(f"v_bfe_u32 v1, v{VL}, 2, 2")
    a(f"v_lshl_add_u32 v1, v2, 3, v1")
    a(f"v_lshlrev_b32 v1, 6, v1")
    a(f"v_and_b32 v2, 3, v{VL}")
    a(f"v_lshl_add_u32 v1, v2, 3, v1")
    a(f"v_add_u32 v9, s{S_LB}, v1")
    a(f"s_lshr_b32 s{S_KB}, s48, 1")
    a(f"s_lshl_b32 s{S_KB}, s{S_KB}, 12")
    a(f"s_add_u32 s{S_KB}, s{S_KB}, {WS_KV}")
    a(f"s_and_b32 s48, s48, 1")
    a(f"s_and_b32 s49, s{S_W}, 1")
    a(f"s_bitcmp1_b32 s{S_J}, 0")
    a(f"s_cselect_b32 s50, s48, s49")
    a(f"s_cselect_b32 s51, s49, s48")
    a(f"s_cselect_b32 s{S_T}, 2048, 0")
    a(f"s_add_u32 s{S_KB}, s{S_KB}, s{S_T}")
    a(f"s_lshl_b32 s50, s50, 10")
    a(f"s_lshl_b32 s51, s51, 8")
    a(f"s_add_u32 s{S_KB}, s{S_KB}, s50")
    a(f"s_add_u32 s{S_KB}, s{S_KB}, s51")
    VF, VFO, VFW, VA = 16, 48, 50, 52
    S_U = 58
    for j in range(2):
        a(f"s_add_u32 s50, s{S_W}, {8*j}")
        a(f"s_mul_i32 s51, s50, 52")
        a(f"s_lshr_b32 s51, s51, 8")
        a(f"s_mul_i32 s52, s51, 5")
        a(f"s_sub_u32 s52, s50, s52")
        a(f"s_lshl_b32 s52, s52, 6")
        a(f"v_add_u32 v10, s52, v{VL}")
        a(f"s_lshl_b32 s53, s51, 8")
        a(f"s_add_u32 s53, s53, s2")
        a(f"s_mul_i32 s{S_U+j}, s53, {F_PITCH}")
        a(f"s_add_u32 s{S_U+j}, s{S_U+j}, {WS_F}")
        a(f"s_cmp_ge_u32 s53, {F_ROWS}")
        a(f"s_cselect_b32 s{S_U+j}, 0, s{S_U+j}")
        a(f"s_mov_b32 s57, 1.0")
        a(f"s_and_b32 s54, s53, 511")
        a(f"s_cmp_eq_u32 s54, 0")
        a(f"s_cselect_b32 s57, 0.5, s57")
        a(f"s_lshl_b32 s51, s51, 13")
        a(f"s_add_u32 s51, s51, {FB}")
        a(f"v_lshlrev_b32 v{VFO+j}, 1, v10")
        a(f"v_sub_u32 v6, 2048, v{VFO+j}")
        a(f"v_and_b32 v6, 2047, v6")
        a(f"v_sub_u32 v7, 1024, v{VFO+j}")
        a(f"v_add_u32 v{VA+3*j}, s51, v{VFO+j}")
        a(f"v_add_u32 v{VA+3*j+1}, s51, v6")
        a(f"v_add_u32 v{VA+3*j+2}, s51, v7")
        a(f"v_mov_b32 v{VFW+j}, s57")
        a(f"v_and_b32 v1, 255, v10")
        a(f"v_cmp_eq_u32 vcc, 0, v1")
        a(f"v_mul_f32 v1, 0.5, v{VFW+j}")
        a("s_nop 1")
        a(f"v_cndmask_b32 v{VFW+j}, v{VFW+j}, v1, vcc")
        a(f"v_cmp_ge_u32 vcc, 256, v10")
        a(f"s_cmp_le_u32 s53, 512")
        a(f"s_cselect_b64 s[{60+2*j}:{61+2*j}], vcc, 0")
    for r in range(32):
        a(f"v_mov_b32 v{VF+r}, 0")
    a(f"s_waitcnt vmcnt({3+NPF})")
    mark(a, 0)
    for ks in range(4):
        for c in range(2):
            r = WF + 8*ks + 4*c
            a(f"ds_read_b64_tr_b16 {vr(r,2)}, v9 offset:{ks*2048 + c*32}")
            a(f"ds_read_b64_tr_b16 {vr(r+2,2)}, v9 offset:{ks*2048 + c*32 + 256}")
        if ks == 1: a("s_waitcnt lgkmcnt(4)")
    Lv, Lj, Lnr = a.label("kvv"), a.label("kvj"), a.label("kvn")
    a("s_waitcnt lgkmcnt(0)")
    a(f"s_bitcmp1_b32 s{S_J}, 0")
    a(f"s_cbranch_scc1 {Lv}")
    for ks in range(4):
        for c in range(2):
            a(mfma16(ACC+4*c, WF+8*ks+4*c, XF+4*ks, "0" if ks == 0 else None))
    a(f"s_branch {Lj}")
    a(f"{Lv}:")
    for ks in range(4):
        for c in range(2):
            a(mfma16(ACC+4*c, XF+4*ks, WF+8*ks+4*c, "0" if ks == 0 else None))
    a(f"{Lj}:")
    a(f"v_add_u32 v9, s{S_LB}, v{V16}")
    a("s_nop 15")
    for c in range(2):
        a(f"ds_write_b128 v9, {vr(ACC+4*c,4)} offset:{c*1024}")
    a(f"s_waitcnt vmcnt({NPF}) lgkmcnt(0)")
    mark(a, 1)
    a("s_barrier")
    mark(a, 2)
    a(f"s_cmp_lt_u32 s{S_W}, 6")
    a(f"s_cbranch_scc1 {Lnr}")
    a(f"s_lshl_b32 s49, s49, 10")
    a(f"v_add_u32 v9, s49, v{V16}")
    B = 64
    for w in range(8):
        a(f"ds_read_b128 {vr(B+4*w,4)}, v9 offset:{w*8192}")
    for w in range(1, 8):
        a(f"s_waitcnt lgkmcnt({7-w})")
        for r in range(4):
            a(f"v_add_f32 v{B+r}, v{B+r}, v{B+4*w+r}")
    a(f"v_cvt_pk_bf16_f32 v{B}, v{B}, v{B+1}")
    a(f"v_cvt_pk_bf16_f32 v{B+1}, v{B+2}, v{B+3}")
    a(f"buffer_store_dwordx2 {vr(B,2)}, v8, s[{SWS}:{SWS+3}], s{S_KB} offen")
    a(f"{Lnr}:")
    Lfin = a.label("ffin")
    VFP = 100
    for j in range(2):
        a(f"s_cmp_eq_u32 s{S_U+j}, 0")
        a(f"s_cbranch_scc1 {Lfin}")
        b = VF + 16*j
        X = lambda r, c: b + 4*r + c
        a(f"s_mov_b64 exec, s[{60+2*j}:{61+2*j}]")
        for r in range(4):
            a(f"ds_read_u16_d16_hi v{X(r,0)}, v{VA+3*j} offset:{r*2048}")
            a(f"ds_read_u16_d16_hi v{X(r,1)}, v{VA+3*j+1} offset:{r*2048}")
            a(f"ds_read_u16_d16_hi v{X(r,2)}, v{VA+3*j+2} offset:{r*2048}")
            a(f"ds_read_u16_d16_hi v{X(r,3)}, v{VA+3*j} offset:{r*2048+1024}")
            if r == 2: a("s_waitcnt lgkmcnt(8)")
        a("s_mov_b64 exec, -1")
        a("s_waitcnt lgkmcnt(0)")
        for c in range(4):
            a(f"v_add_f32 v1, v{X(0,c)}, v{X(1,c)}")
            a(f"v_sub_f32 v2, v{X(0,c)}, v{X(1,c)}")
            a(f"v_add_f32 v3, v{X(2,c)}, v{X(3,c)}")
            a(f"v_sub_f32 v6, v{X(2,c)}, v{X(3,c)}")
            a(f"v_add_f32 v{X(0,c)}, v1, v3")
            a(f"v_sub_f32 v{X(1,c)}, v1, v3")
            a(f"v_sub_f32 v{X(2,c)}, v2, v6")
            a(f"v_add_f32 v{X(3,c)}, v2, v6")
        for r in range(4):
            c0, c1, c2, c3 = X(r,0), X(r,1), X(r,2), X(r,3)
            if r < 2:
                a(f"v_add_f32 v1, v{c0}, v{c1}")
                a(f"v_add_f32 v2, v{c2}, v{c3}")
                a(f"v_add_f32 v3, v1, v2")
                a(f"v_sub_f32 v6, v1, v2")
            else:
                a(f"v_sub_f32 v1, v{c0}, v{c1}")
                a(f"v_sub_f32 v2, v{c2}, v{c3}")
                a(f"v_sub_f32 v3, v1, v2")
                a(f"v_add_f32 v6, v1, v2")
            a(f"v_mul_f32 v3, v3, v{VFW+j}")
            a(f"v_mul_f32 v6, v6, v{VFW+j}")
            a(f"v_cvt_pk_bf16_f32 v{VFP+4*j+r}, v3, v6")
            a(f"s_add_u32 s51, s{S_U+j}, {(2*r)*F_CLS}")
            a(f"s_add_u32 s52, s{S_U+j}, {(2*r+1)*F_CLS}")
            a(f"buffer_store_short v{VFP+4*j+r}, v{VFO+j}, s[{SWS}:{SWS+3}], s51 offen")
            a(f"buffer_store_short_d16_hi v{VFP+4*j+r}, v{VFO+j}, s[{SWS}:{SWS+3}], s52 offen")
    a(f"{Lfin}:")
    mark(a, 3)
    stamp_end(a)
    dump_marks(a)
    a(f"{Lend}:")
    a("s_endpgm")
    kernel_end(a, name, 120)
```

```python
from common import *
from gemm import *
import math

QKV_SLOTS = 5
QKV_STAGE = 16384 + 8192 + 1024
QKV_LDS = QKV_SLOTS * QKV_STAGE
NUNITS = F_ROWS * 5

def krot(a, skk, t0):
    a(f"s_lshr_b32 s{t0}, s2, 3")
    a(f"s_and_b32 s{skk}, s{t0}, 7")
    a(f"s_lshl_b32 s{skk}, s{skk}, 1")
    a(f"s_lshr_b32 s{t0}, s{t0}, 3")
    a(f"s_lshl_b32 s{t0+1}, s{t0}, 2")
    a(f"s_add_u32 s{skk}, s{skk}, s{t0+1}")
    a(f"s_and_b32 s{t0}, s{t0}, 1")
    a(f"s_add_u32 s{skk}, s{skk}, s{t0}")
    a(f"s_and_b32 s{skk}, s{skk}, 15")
    if os.environ.get("NOROT"): a(f"s_mov_b32 s{skk}, 0")

def gen_qkv(a, name):
    kernel_begin(a, name)
    Lend = a.label("end"); Lcomp = a.label("comp")
    a(f"s_cmp_ge_u32 s2, 256")
    a(f"s_cbranch_scc1 {Lend}")
    stamp_begin(a)
    a("s_load_dwordx8 s[4:11], s[0:1], 0")
    load_ptr(a, 12, "B_x"); load_ptr(a, 14, "ws")
    S_TM, S_TN, S_W, S_WM, S_WN, S_A = 40, 41, 42, 43, 44, 45
    xcd_tile(a, S_TM, S_TN, 46)
    VL = 4
    lane_wave(a, VL, S_W)
    RS = [64, 65, 66, 67]; S_KK = 68
    S_T = RS[2]
    pipe = Pipe(a, QKV_SLOTS, QKV_STAGE, RS)
    a(f"s_and_b32 s{S_A}, s{S_TN}, 7")
    SX, SW, SE, SB, SWS = 16, 20, 24, 28, 32
    VX, VW, VE = 8, 12, 14
    S_XB, S_WB, S_EB, S_LX, S_LW, S_LE = 58, 59, 60, 61, 62, 63
    groups = [
        Group(SX, S_XB, 7, S_LX, [(VX + p, p * 1024) for p in range(4)]),
        Group(SW, S_WB, 17, S_LW, [(VW + p, 16384 + p * 1024) for p in range(2)]),
        Group(SE, S_EB, 12, S_LE, [(VE, 24576)]),
    ]
    VB, VA = 16, 26
    FR = 40
    frags = [
        Frag('b128', lambda u: (u, 0), [FR + 16*u for u in range(4)]),
        Frag('b128', lambda u: (4 + u, 0), [FR + 4 + 16*u for u in range(4)]),
        Frag('tr', lambda u: (8, 16384 + (16*u) * 128, 16384 + (16*u + 4) * 128), [FR + 8 + 16*u for u in range(4)]),
        Frag('tr', lambda u: (9, 24576 + (16*u) * 16, 24576 + (16*u + 4) * 16), [FR + 12 + 16*u for u in range(4)]),
    ]
    ACC = 104
    mf = [(ACC, 2, 0), (ACC + 16, 2, 1), (ACC + 32, 3, 0)]
    ph = Phase(16, S_KK, groups, frags, mf, list(range(VB, VB + 10)), list(range(VA, VA + 10)))
    a(f"s_cmp_lt_u32 s{S_W}, 4")
    a(f"s_cbranch_scc1 {Lcomp}")
    a(f"s_sub_u32 s{S_W}, s{S_W}, 4")
    krot(a, S_KK, 46)
    for p in range(4):
        rm_voff(a, VX + p, VL, p & 1, pitch_log2=11)
        if p:
            a(f"v_add_u32 v{VX+p}, {p*8*2048}, v{VX+p}")
    kn_voff(a, VW, VL, 11)
    a(f"v_add_u32 v{VW+1}, {8*2048}, v{VW}")
    a(f"v_lshlrev_b32 v{VE}, 6, v{VL}")
    a(f"s_lshl_b32 s{S_XB}, s{S_TM}, 18")
    a(f"s_lshl_b32 s{S_T}, s{S_W}, 16")
    a(f"s_add_u32 s{S_XB}, s{S_XB}, s{S_T}")
    a(f"s_lshl_b32 s{S_WB}, s{S_TN}, 7")
    a(f"s_lshl_b32 s{S_T}, s{S_W}, 15")
    a(f"s_add_u32 s{S_WB}, s{S_WB}, s{S_T}")
    a(f"s_and_b32 s{S_EB}, s{S_A}, 3")
    a(f"s_lshl_b32 s{S_EB}, s{S_EB}, 4")
    a(f"s_lshl_b32 s{S_LX}, s{S_W}, 12")
    a(f"s_lshl_b32 s{S_LW}, s{S_W}, 11")
    a(f"s_mov_b32 s{S_LE}, 0")
    a("s_waitcnt lgkmcnt(0)")
    make_srd(a, SX, 4, 4 << 20)
    make_srd(a, SW, 6, 2 << 20)
    a(f"s_cmp_lt_u32 s{S_A}, 4")
    a(f"s_cselect_b32 s{SE}, s8, s10")
    a(f"s_cselect_b32 s{SE+1}, s9, s11")
    a(f"s_mov_b32 s{SE+2}, 65536")
    a(f"s_mov_b32 s{SE+3}, 0x20000")
    pipe.loader_prologue(ph)
    make_srd(a, SB, 12, 4 << 20)
    make_srd(a, SWS, 14, WS_SIZE)
    VF = 152
    VFO = 200
    VFW = 203
    VFP = 206
    S_U = 48
    a(f"s_lshl_b32 s{S_U}, s2, 2")
    a(f"s_add_u32 s{S_U}, s{S_U}, s{S_W}")
    a(f"s_add_u32 s{S_U+1}, s{S_U}, 1024")
    a(f"s_add_u32 s{S_U+2}, s{S_U}, 2048")
    a(f"s_min_u32 s{S_U+2}, s{S_U+2}, {NUNITS-1}")
    for r in range(48):
        a(f"v_mov_b32 v{VF+r}, 0")
    fl = []
    for j in range(3):
        su = S_U + j
        a(f"s_mov_b32 s51, {hex((1<<32)//5+1)}")
        a(f"s_mul_hi_u32 s52, s{su}, s51")
        a(f"s_mul_i32 s51, s52, 5")
        a(f"s_sub_u32 s51, s{su}, s51")
        a(f"s_lshl_b32 s51, s51, 6")
        a(f"v_add_u32 v5, s51, v{VL}")
        a(f"s_mul_i32 s{su}, s52, {F_PITCH}")
        a(f"s_add_u32 s{su}, s{su}, {WS_F}")
        a(f"s_mov_b32 s57, 1.0")
        a(f"s_and_b32 s51, s52, 511")
        a(f"s_cmp_eq_u32 s51, 0")
        a(f"s_cselect_b32 s57, 0.5, s57")
        a(f"s_cmp_gt_u32 s52, 512")
        a(f"s_cselect_b32 s57, 0, s57")
        a(f"s_cselect_b32 s52, 0, s52")
        SR = 72 + 4*j
        a(f"s_lshl_b32 s{SR}, s52, 11")
        a(f"s_sub_u32 s{SR+1}, 2048, s52")
        a(f"s_and_b32 s{SR+1}, s{SR+1}, 2047")
        a(f"s_lshl_b32 s{SR+1}, s{SR+1}, 11")
        a(f"s_sub_u32 s{SR+2}, 1024, s52")
        a(f"s_lshl_b32 s{SR+2}, s{SR+2}, 11")
        a(f"s_add_u32 s{SR+3}, 1024, s52")
        a(f"s_lshl_b32 s{SR+3}, s{SR+3}, 11")
        VC1, VC2 = 20 + 2*j, 21 + 2*j
        a(f"v_lshlrev_b32 v{VFO+j}, 1, v5")
        a(f"v_sub_u32 v{VC1}, 2048, v{VFO+j}")
        a(f"v_and_b32 v{VC1}, 2047, v{VC1}")
        a(f"v_sub_u32 v{VC2}, 1024, v{VFO+j}")
        for r in range(4):
            if os.environ.get("NOFOLD"): break
            b = VF + 16*j + 4*r
            fl.append(f"buffer_load_short_d16_hi v{b}, v{VFO+j}, s[{SB}:{SB+3}], s{SR+r} offen")
            fl.append(f"buffer_load_short_d16_hi v{b+1}, v{VC1}, s[{SB}:{SB+3}], s{SR+r} offen")
            fl.append(f"buffer_load_short_d16_hi v{b+2}, v{VC2}, s[{SB}:{SB+3}], s{SR+r} offen")
            fl.append(f"buffer_load_short_d16_hi v{b+3}, v{VFO+j}, s[{SB}:{SB+3}], s{SR+r} offen offset:1024")
        a(f"v_mov_b32 v{VFW+j}, s57")
        a(f"v_and_b32 v1, 255, v5")
        a(f"v_cmp_eq_u32 vcc, 0, v1")
        a(f"v_mul_f32 v1, 0.5, v{VFW+j}")
        a("s_nop 1")
        a(f"v_cndmask_b32 v{VFW+j}, v{VFW+j}, v1, vcc")
        a(f"v_cmp_lt_u32 vcc, 256, v5")
        a("s_nop 1")
        a(f"v_cndmask_b32 v{VFW+j}, v{VFW+j}, 0, vcc")
    pipe.loader_first(ph)
    cnt = [7, 7]
    for it in range(11):
        a(f"s_waitcnt vmcnt({cnt[0] + cnt[1]})")
        a("s_barrier")
        ex = fl[6*it:6*it+6]
        for x in ex: a(x)
        pipe.issue(ph)
        cnt = [cnt[1], 7 + len(ex)]
    pipe.loader_tail(7)
    for j in range(3):
        b = VF + 16*j
        X = lambda r, c: b + 4*r + c
        for c in range(4):
            a(f"v_add_f32 v1, v{X(0,c)}, v{X(1,c)}")
            a(f"v_sub_f32 v2, v{X(0,c)}, v{X(1,c)}")
            a(f"v_add_f32 v3, v{X(2,c)}, v{X(3,c)}")
            a(f"v_sub_f32 v6, v{X(2,c)}, v{X(3,c)}")
            a(f"v_add_f32 v{X(0,c)}, v1, v3")
            a(f"v_sub_f32 v{X(1,c)}, v1, v3")
            a(f"v_sub_f32 v{X(2,c)}, v2, v6")
            a(f"v_add_f32 v{X(3,c)}, v2, v6")
        for r in range(4):
            c0, c1, c2, c3 = X(r,0), X(r,1), X(r,2), X(r,3)
            if r < 2:
                a(f"v_add_f32 v1, v{c0}, v{c1}")
                a(f"v_add_f32 v2, v{c2}, v{c3}")
                a(f"v_add_f32 v3, v1, v2")
                a(f"v_sub_f32 v6, v1, v2")
            else:
                a(f"v_sub_f32 v1, v{c0}, v{c1}")
                a(f"v_sub_f32 v2, v{c2}, v{c3}")
                a(f"v_sub_f32 v3, v1, v2")
                a(f"v_add_f32 v6, v1, v2")
            a(f"v_mul_f32 v3, v3, v{VFW+j}")
            a(f"v_mul_f32 v6, v6, v{VFW+j}")
            a(f"v_cvt_pk_bf16_f32 v{VFP+4*j+r}, v3, v6")
            a(f"s_add_u32 s51, s{S_U+j}, {(2*r)*F_CLS}")
            a(f"s_add_u32 s52, s{S_U+j}, {(2*r+1)*F_CLS}")
            a(f"buffer_store_short v{VFP+4*j+r}, v{VFO+j}, s[{SWS}:{SWS+3}], s51 offen")
            a(f"buffer_store_short_d16_hi v{VFP+4*j+r}, v{VFO+j}, s[{SWS}:{SWS+3}], s52 offen")
    a(f"s_branch {Lend}")
    a(f"{Lcomp}:")
    a(f"s_lshr_b32 s{S_WM}, s{S_W}, 1")
    a(f"s_and_b32 s{S_WN}, s{S_W}, 1")
    a("s_waitcnt lgkmcnt(0)")
    make_srd(a, SWS, 14, WS_SIZE)
    if os.environ.get("PF"):
        make_srd(a, SX, 4, 4 << 20)
        make_srd(a, SW, 6, 2 << 20)
        a(f"s_lshr_b32 s51, s2, 3")
        a(f"s_lshl_b32 s51, s51, 2")
        a(f"s_add_u32 s51, s51, s{S_W}")
        a(f"s_lshr_b32 s52, s{S_TM}, 2")
        a(f"s_lshl_b32 s52, s52, 20")
        a(f"s_lshl_b32 s53, s51, 13")
        a(f"s_add_u32 s52, s52, s53")
        a(f"v_lshlrev_b32 v1, 6, v{VL}")
        a(f"buffer_load_dword v40, v1, s[{SX}:{SX+3}], s52 offen")
        a(f"s_add_u32 s52, s52, 4096")
        a(f"buffer_load_dword v41, v1, s[{SX}:{SX+3}], s52 offen")
        a(f"v_lshrrev_b32 v2, 4, v{VL}")
        a(f"v_lshlrev_b32 v2, 11, v2")
        a(f"v_and_b32 v1, 15, v{VL}")
        a(f"v_lshl_add_u32 v1, v1, 6, v2")
        a(f"s_lshr_b32 s52, s{S_TN}, 3")
        a(f"s_lshl_b32 s52, s52, 10")
        a(f"s_lshl_b32 s53, s51, 14")
        a(f"s_add_u32 s52, s52, s53")
        a(f"buffer_load_dword v42, v1, s[{SW}:{SW+3}], s52 offen")
        a(f"s_add_u32 s52, s52, 8192")
        a(f"buffer_load_dword v43, v1, s[{SW}:{SW+3}], s52 offen")
    rm_frag_addr(a, 5, VL)
    a(f"s_lshl_b32 s{S_T}, s{S_WM}, 1")
    a(f"s_add_u32 s{S_T}, s{S_T}, s{S_WN}")
    a(f"s_lshl_b32 s{S_T}, s{S_T}, 12")
    a(f"v_add_u32 v5, s{S_T}, v5")
    for u in range(4):
        a(f"v_xor_b32 v{VB+u}, {u*32}, v5")
        a(f"v_xor_b32 v{VB+4+u}, {4096 + u*32}, v5")
    kn_frag_addr(a, VB + 8, VL, S_WN, False)
    a(f"v_bfe_u32 v1, v{VL}, 2, 2")
    a(f"v_lshrrev_b32 v2, 5, v{VL}")
    a(f"v_lshl_add_u32 v2, v2, 3, v1")
    a(f"v_lshlrev_b32 v2, 4, v2")
    a(f"v_and_b32 v1, 1, v{VL}")
    a(f"v_lshl_add_u32 v{VB+9}, v1, 3, v2")
    pipe.compute(ph, True)
    mark(a, 2)
    cq = (32 ** -0.5) * math.log2(math.e)
    S_C = 46
    a(f"s_mov_b32 s{S_C}, {hex(f32bits(cq))}")
    a(f"v_lshlrev_b32 v5, 4, v{VL}")
    a(f"s_lshl_b32 s{S_T}, s{S_WM}, 1")
    a(f"s_add_u32 s{S_T}, s{S_T}, s{S_WN}")
    a(f"s_lshl_b32 s52, s{S_TM}, 2")
    a(f"s_add_u32 s52, s52, s{S_T}")
    a(f"s_xor_b32 s53, s52, 1")
    a(f"s_lshl_b32 s54, s{S_TN}, 1")
    a(f"s_add_u32 s54, s54, s{S_WN}")
    a(f"s_lshl_b32 s54, s54, 11")
    a(f"s_lshl_b32 s55, s52, 16")
    a(f"s_add_u32 s55, s55, s54")
    a(f"s_lshl_b32 s56, s53, 16")
    a(f"s_add_u32 s56, s56, s54")
    a("s_nop 3")
    PK = 40
    for i, so in ((0, 55), (1, 56)):
        pack16(a, PK + 8*i, ACC + 16*i, S_C)
        a(f"buffer_store_dwordx4 {vr(PK+8*i,4)}, v5, s[{SWS}:{SWS+3}], s{so} offen")
        a(f"buffer_store_dwordx4 {vr(PK+8*i+4,4)}, v5, s[{SWS}:{SWS+3}], s{so} offen offset:1024")
    Lnoext = a.label("noext"); Lv = a.label("extv")
    a(f"s_cmp_ge_u32 s{S_TN}, 8")
    a(f"s_cbranch_scc1 {Lnoext}")
    E = ACC + 32
    a(f"v_cvt_pk_bf16_f32 v{PK+16}, v{E}, v{E+1}")
    a(f"v_cvt_pk_bf16_f32 v{PK+17}, v{E+2}, v{E+3}")
    a(f"s_lshl_b32 s57, s52, 12")
    a(f"s_add_u32 s57, s57, {WS_KV}")
    a(f"s_cmp_ge_u32 s{S_A}, 4")
    a(f"s_cbranch_scc1 {Lv}")
    a(f"s_lshr_b32 s51, s{S_A}, 1")
    a(f"s_lshl_b32 s51, s51, 10")
    a(f"s_add_u32 s57, s57, s51")
    a(f"s_and_b32 s51, s{S_A}, 1")
    a(f"s_lshl_b32 s51, s51, 3")
    a(f"s_add_u32 s57, s57, s51")
    a(f"buffer_store_dwordx2 {vr(PK+16,2)}, v5, s[{SWS}:{SWS+3}], s57 offen")
    a(f"s_branch {Lnoext}")
    a(f"{Lv}:")
    a(f"s_and_b32 s51, s{S_A}, 3")
    a(f"s_lshl_b32 s51, s51, 7")
    a(f"s_add_u32 s57, s57, s51")
    a(f"s_add_u32 s57, s57, 2048")
    a(f"v_bfe_u32 v1, v{VL}, 4, 1")
    a(f"v_lshlrev_b32 v2, 10, v1")
    a(f"v_bfe_u32 v1, v{VL}, 2, 1")
    a(f"v_lshl_add_u32 v2, v1, 9, v2")
    a(f"v_bfe_u32 v1, v{VL}, 3, 1")
    a(f"v_lshl_add_u32 v2, v1, 3, v2")
    a(f"v_and_b32 v1, 3, v{VL}")
    a(f"v_lshl_add_u32 v2, v1, 1, v2")
    a(f"v_lshrrev_b32 v1, 5, v{VL}")
    a(f"v_lshl_add_u32 v2, v1, 6, v2")
    a(f"buffer_store_short v{PK+16}, v2, s[{SWS}:{SWS+3}], s57 offen")
    a(f"buffer_store_short_d16_hi v{PK+16}, v2, s[{SWS}:{SWS+3}], s57 offen offset:16")
    a(f"buffer_store_short v{PK+17}, v2, s[{SWS}:{SWS+3}], s57 offen offset:32")
    a(f"buffer_store_short_d16_hi v{PK+17}, v2, s[{SWS}:{SWS+3}], s57 offen offset:48")
    a(f"{Lnoext}:")
    mark(a, 3)
    stamp_end(a)
    dump_marks(a)
    a(f"{Lend}:")
    a("s_endpgm")
    kernel_end(a, name, 220)
```

```python
import sys
from common import *
import k_qkv, k_fnet, k_attn, k_out, k_pre, k_front, k_attn2, k_attn_fused
a = Asm()
launches = [
    ("pre_kernel", 256, 512, k_pre.PRE_LDS, k_pre.gen_pre),
    ("attn_kernel", 256, 768, k_attn.AT_LDS, k_attn.gen_attn),
    ("outp_kernel", 256, 512, k_out.OP_LDS, k_out.gen_out),
]
if not os.environ.get("OLD3"):
    launches[0] = ("front_kernel", 256, 768, k_front.FR_LDS, k_front.gen_front)
    launches[1] = ("attn_kernel", 256, 576, k_attn2.AT_LDS, k_attn2.gen_attn)
if not os.environ.get("NOFUSE"):
    launches = [("attn_kernel", 256, 768, k_attn_fused.AT_LDS, k_attn_fused.gen_attn), launches[2]]
hdr = "; generated by gen/gen.py\n"
for n, g, b, l, f in launches:
    hdr += f"; @launch kernel={n} grid=({g},1,1) block=({b},1,1) lds={l}\n"
    f(a, n)
out = sys.argv[1] if len(sys.argv) > 1 else f"cdna_kernels/{NAME}.s"
open(out, "w").write(hdr + '.amdgcn_target "amdgcn-amd-amdhsa--gfx950"\n' + a.text())
```

```python
from common import *
from gemm import *
from k_fnet import sdiv
import math

S1_BASE = 3 * 16384
S1_STG = 8192 + 12288
AT_LDS = 163840
FLAG_STEP = int(os.environ.get('FLAG_STEP', '2'))
FOLD_STEP = [int(x) for x in os.environ.get('FOLD_STEP', '8,11').split(',')]
FORCE_FB = int(os.environ.get('FORCE_FB', '0'))
SPIN_LIMIT = 2 if FORCE_FB else 4096
DW = 163840 - 16
NUNITS_X = F_ROWS * 5 // 8
S1_UNITS = 216
BIAS = 90.0
THRESH = 2.0 ** 96
ABL = int(os.environ.get("ABL", "256"))

VF, VFO, VFW, VFP = 64, 128, 152, 136
EX = 16
S_U = 44
SBX = 20
SC = 'sc0 sc1'
def pre_part(a, VL, V16, S_W, S_X, S_J, S_T, SWS, lead=True):
    SXX, SE, SB = 16, 20, 24
    S_LB, S_KB = 40, 41
    XF, WF, ACC = 64, 80, 112
    if lead:
        a(f"s_add_u32 s3, s2, s{S_W}")
        a(f"s_cmp_eq_u32 s3, 0")
        a(f"s_cselect_b32 s30, -1, 0")
        a(f"s_mov_b32 s31, 0")
        for r in range(4): a(f"v_mov_b32 v{60+r}, 0")
        a(f"v_lshlrev_b32 v1, 7, v{VL}")
        a(f"s_mov_b64 exec, s[30:31]")
        a(f"buffer_store_dwordx4 v[60:63], v1, s[{SWS}:{SWS+3}], 0 offen {SC}")
        a(f"s_mov_b64 exec, -1")
    make_srd(a, SXX, 96, 4 << 20)
    a(f"s_bitcmp1_b32 s{S_J}, 0")
    a(f"s_cselect_b32 s{SE}, s58, s56")
    a(f"s_cselect_b32 s{SE+1}, s59, s57")
    a(f"s_mov_b32 s{SE+2}, 65536")
    a(f"s_mov_b32 s{SE+3}, 0x20000")
    a(f"s_lshl_b32 s45, s{S_W}, 13")
    a(f"s_cmp_ge_u32 s{S_W}, 6")
    a(f"s_cselect_b32 s{S_LB}, {96*1024}, 0")
    a(f"s_add_u32 s{S_LB}, s{S_LB}, s45")
    if lead and os.environ.get("KVD"): a(f"s_sleep {os.environ.get('KVD')}")
    for p in range(8):
        a(f"s_add_u32 m0, s{S_LB}, {p*1024}")
        a(f"s_add_u32 s{S_T}, s45, {p*1024}")
        a(f"buffer_load_dwordx4 v{V16}, s[{SE}:{SE+3}], s{S_T} offen lds")
    a(f"s_lshl_b32 s46, s{S_X}, 4")
    a(f"s_lshr_b32 s{S_T}, s{S_J}, 1")
    a(f"s_add_u32 s46, s46, s{S_T}")
    a(f"s_lshl_b32 s45, s46, 15")
    a(f"s_lshl_b32 s{S_T}, s{S_W}, 8")
    a(f"s_add_u32 s45, s45, s{S_T}")
    a(f"v_and_b32 v1, 15, v{VL}")
    a(f"v_lshrrev_b32 v2, 4, v{VL}")
    a(f"v_lshlrev_b32 v3, 4, v2")
    a(f"v_lshl_add_u32 v3, v1, 11, v3")
    for ks in range(4):
        a(f"buffer_load_dwordx4 {vr(XF+4*ks,4)}, v3, s[{SXX}:{SXX+3}], s45 offen offset:{ks*64}")
    a(f"v_and_b32 v3, 1, v2")
    a(f"v_lshl_add_u32 v3, v3, 5, v1")
    a(f"v_lshlrev_b32 v3, 4, v3")
    a(f"v_lshrrev_b32 v8, 1, v2")
    a(f"v_lshl_add_u32 v8, v8, 3, v3")
    a(f"v_bfe_u32 v1, v{VL}, 2, 2")
    a(f"v_lshl_add_u32 v1, v2, 3, v1")
    a(f"v_lshlrev_b32 v1, 6, v1")
    a(f"v_and_b32 v2, 3, v{VL}")
    a(f"v_lshl_add_u32 v1, v2, 3, v1")
    a(f"v_add_u32 v9, s{S_LB}, v1")
    a(f"s_lshr_b32 s{S_KB}, s46, 1")
    a(f"s_lshl_b32 s{S_KB}, s{S_KB}, 12")
    a(f"s_add_u32 s{S_KB}, s{S_KB}, {WS_KV}")
    a(f"s_and_b32 s46, s46, 1")
    a(f"s_bitcmp1_b32 s{S_J}, 0")
    a(f"s_cselect_b32 s45, 10, 8")
    a(f"s_cselect_b32 s49, 1, 4")
    a(f"s_cselect_b32 s{S_T}, 2048, 0")
    a(f"s_add_u32 s{S_KB}, s{S_KB}, s{S_T}")
    a(f"s_lshl_b32 s46, s46, s45")
    a(f"s_add_u32 s{S_KB}, s{S_KB}, s46")
    a(f"s_lshl_b32 s49, s49, 8")
    a(f"s_add_u32 s49, s49, s{S_KB}")
    if lead:
        make_srd(a, SB, 98, 2 << 20)
        a(f"v_lshrrev_b32 v1, 1, v{VL}")
        a(f"v_and_b32 v2, 1, v{VL}")
        a(f"v_lshlrev_b32 v2, 6, v2")
        a(f"v_lshl_add_u32 v10, v1, 11, v2")
        a(f"s_lshr_b32 s53, s{S_J}, 4")
        a(f"s_lshl_b32 s53, s53, 3")
        a(f"s_add_u32 s53, s53, s{S_J}")
        a(f"s_add_u32 s53, s53, 4")
        a(f"s_lshl_b32 s53, s53, 1")
        a(f"s_add_u32 s53, s53, s{S_W}")
        a(f"s_and_b32 s53, s53, 31")
        a(f"s_lshl_b32 s53, s53, 16")
        a(f"s_and_b32 s54, s{S_J}, 15")
        a(f"s_lshl_b32 s54, s54, 7")
        a(f"s_add_u32 s53, s53, s54")
    a("s_waitcnt vmcnt(2)" if not (ABL & 256) else "s_waitcnt vmcnt(0)")
    if lead:
        if not os.environ.get("NOTOUCH"):
            a(f"buffer_load_dword v56, v10, s[{SB}:{SB+3}], s53 offen")
        a(f"s_and_b32 s30, s30, 1")
        a(f"v_mov_b32 v1, 0")
        a(f"v_mov_b32 v2, 1")
        a(f"s_mov_b64 exec, s[30:31]")
        a(f"global_store_dword v1, v2, s[62:63] {SC}")
        a(f"s_mov_b64 exec, -1")
    for ks in range(4):
        for c in range(2):
            r = WF + 8*ks + 4*c
            a(f"ds_read_b64_tr_b16 {vr(r,2)}, v9 offset:{ks*2048 + c*32}")
            a(f"ds_read_b64_tr_b16 {vr(r+2,2)}, v9 offset:{ks*2048 + c*32 + 256}")
        if ks == 1: a("s_waitcnt lgkmcnt(4)")
    Lv, Lj, Lnr = a.label("kvv"), a.label("kvj"), a.label("kvn")
    a("s_waitcnt lgkmcnt(0)")
    a(f"s_bitcmp1_b32 s{S_J}, 0")
    a(f"s_cbranch_scc1 {Lv}")
    for ks in range(4):
        for c in range(2):
            a(mfma16(ACC+4*c, WF+8*ks+4*c, XF+4*ks, "0" if ks == 0 else None))
    a(f"s_branch {Lj}")
    a(f"{Lv}:")
    for ks in range(4):
        for c in range(2):
            a(mfma16(ACC+4*c, XF+4*ks, WF+8*ks+4*c, "0" if ks == 0 else None))
    a(f"{Lj}:")
    a(f"v_add_u32 v9, s{S_LB}, v{V16}")
    a("s_nop 15")
    for c in range(2):
        a(f"ds_write_b128 v9, {vr(ACC+4*c,4)} offset:{c*1024}")
    a("s_waitcnt lgkmcnt(0)")
    a("s_barrier")
    a(f"s_cmp_lt_u32 s{S_W}, 7")
    a(f"s_cbranch_scc1 {Lnr}")
    a(f"v_add_u32 v10, {144*1024}, v{V16}")
    for c in range(2):
        B = 64 + 32*c
        for w in range(8):
            if w < 6: a(f"ds_read_b128 {vr(B+4*w,4)}, v{V16} offset:{w*8192 + c*1024}")
            else: a(f"ds_read_b128 {vr(B+4*w,4)}, v10 offset:{(w-6)*8192 + c*1024}")
        for w in range(1, 8):
            a(f"s_waitcnt lgkmcnt({7-w})")
            for r in range(4):
                a(f"v_add_f32 v{B+r}, v{B+r}, v{B+4*w+r}")
        a(f"v_cvt_pk_bf16_f32 v{58+2*c}, v{B}, v{B+1}")
        a(f"v_cvt_pk_bf16_f32 v{59+2*c}, v{B+2}, v{B+3}")
        a(f"buffer_store_dwordx2 {vr(58+2*c,2)}, v8, s[{SWS}:{SWS+3}], s{49 if c else S_KB} offen {SC}")
    a(f"{Lnr}:")

def fold_loads(a, j, VL):
    SB = SBX
    RW = 72
    su = S_U + j
    for r in range(16):
        a(f"v_mov_b32 v{VF+16*j+r}, 0")
    a(f"s_mov_b32 s53, {hex((1<<32)//5+1)}")
    a(f"s_mul_hi_u32 s54, s{su}, s53")
    a(f"s_mul_i32 s53, s54, 5")
    a(f"s_sub_u32 s53, s{su}, s53")
    a(f"s_lshl_b32 s53, s53, 6")
    a(f"v_add_u32 v10, s53, v{VL}")
    a(f"s_mul_i32 s{su}, s54, {F_PITCH}")
    a(f"s_add_u32 s{su}, s{su}, {WS_F}")
    a(f"s_mov_b32 s55, 1.0")
    a(f"s_and_b32 s53, s54, 511")
    a(f"s_cmp_eq_u32 s53, 0")
    a(f"s_cselect_b32 s55, 0.5, s55")
    a(f"s_cmp_gt_u32 s54, 512")
    a(f"s_cselect_b32 s55, 0, s55")
    a(f"s_cselect_b32 s54, 0, s54")
    a(f"s_lshl_b32 s{RW}, s54, 11")
    a(f"s_sub_u32 s{RW+1}, 2048, s54")
    a(f"s_and_b32 s{RW+1}, s{RW+1}, 2047")
    a(f"s_lshl_b32 s{RW+1}, s{RW+1}, 11")
    a(f"s_sub_u32 s{RW+2}, 1024, s54")
    a(f"s_lshl_b32 s{RW+2}, s{RW+2}, 11")
    a(f"s_add_u32 s{RW+3}, 1024, s54")
    a(f"s_lshl_b32 s{RW+3}, s{RW+3}, 11")
    a(f"v_lshlrev_b32 v{VFO+j}, 1, v10")
    a(f"v_sub_u32 v6, 2048, v{VFO+j}")
    a(f"v_and_b32 v6, 2047, v6")
    a(f"v_sub_u32 v7, 1024, v{VFO+j}")
    if j == 3: a(f"s_mov_b64 exec, s[{EX}:{EX+1}]")
    for r in range(4):
        b = VF + 16*j + 4*r
        a(f"buffer_load_short_d16_hi v{b}, v{VFO+j}, s[{SB}:{SB+3}], s{RW+r} offen")
        a(f"buffer_load_short_d16_hi v{b+2}, v6, s[{SB}:{SB+3}], s{RW+r} offen")
        a(f"buffer_load_short_d16_hi v{b+1}, v7, s[{SB}:{SB+3}], s{RW+r} offen")
        a(f"buffer_load_short_d16_hi v{b+3}, v{VFO+j}, s[{SB}:{SB+3}], s{RW+r} offen offset:1024")
    if j == 3: a(f"s_mov_b64 exec, -1")
    a(f"v_mov_b32 v{VFW+2*j}, s55")
    a(f"v_and_b32 v1, 255, v10")
    a(f"v_cmp_eq_u32 vcc, 0, v1")
    a(f"v_mul_f32 v1, 0.5, v{VFW+2*j}")
    a("s_nop 1")
    a(f"v_cndmask_b32 v{VFW+2*j}, v{VFW+2*j}, v1, vcc")
    a(f"v_cmp_lt_u32 vcc, 256, v10")
    a("s_nop 1")
    a(f"v_cndmask_b32 v{VFW+2*j}, v{VFW+2*j}, 0, vcc")

def fold_compute(a, j, SWS):
    if True:
        if j == 3: a(f"s_mov_b64 exec, s[{EX}:{EX+1}]")
        b = VF + 16*j
        X = lambda r, h: vr(b + 4*r + h, 2)
        NEG = "neg_lo:[0,1] neg_hi:[0,1]"
        for h in (0, 2):
            a(f"v_pk_add_f32 v[2:3], {X(0,h)}, {X(1,h)}")
            a(f"v_pk_add_f32 v[6:7], {X(0,h)}, {X(1,h)} {NEG}")
            a(f"v_pk_add_f32 v[8:9], {X(2,h)}, {X(3,h)}")
            a(f"v_pk_add_f32 v[10:11], {X(2,h)}, {X(3,h)} {NEG}")
            a(f"v_pk_add_f32 {X(0,h)}, v[2:3], v[8:9]")
            a(f"v_pk_add_f32 {X(1,h)}, v[2:3], v[8:9] {NEG}")
            a(f"v_pk_add_f32 {X(2,h)}, v[6:7], v[10:11] {NEG}")
            a(f"v_pk_add_f32 {X(3,h)}, v[6:7], v[10:11]")
        for r in range(4):
            a(f"v_pk_add_f32 v[2:3], {X(r,0)}, {X(r,2)} {'' if r < 2 else NEG}")
            a(f"v_pk_add_f32 v[6:7], v[2:3], v[2:3] op_sel:[0,1] op_sel_hi:[0,1] {'neg_hi:[0,1]' if r < 2 else 'neg_lo:[0,1]'}")
            a(f"v_pk_mul_f32 v[6:7], v[6:7], {vr(VFW+2*j,2)} op_sel_hi:[1,0]")
            a(f"v_cvt_pk_bf16_f32 v{VFP+4*j+r}, v6, v7")
            a(f"s_add_u32 s53, s{S_U+j}, {(2*r)*F_CLS}")
            a(f"s_add_u32 s54, s{S_U+j}, {(2*r+1)*F_CLS}")
            a(f"buffer_store_short v{VFP+4*j+r}, v{VFO+j}, s[{SWS}:{SWS+3}], s53 offen {SC}")
            a(f"buffer_store_short_d16_hi v{VFP+4*j+r}, v{VFO+j}, s[{SWS}:{SWS+3}], s54 offen {SC}")

def gen_attn(a, name):
    kernel_begin(a, name)
    Lend = a.label("end")
    a(f"s_cmp_ge_u32 s2, 256")
    a(f"s_cbranch_scc1 {Lend}")
    stamp_begin(a)
    load_ptr(a, 14, "ws")
    a("s_load_dwordx4 s[4:7], s[0:1], 64")
    a("s_load_dwordx4 s[8:11], s[0:1], 48")
    load_ptr(a, 12, "wo")
    a("s_load_dwordx4 s[96:99], s[0:1], 0")
    a("s_load_dwordx4 s[56:59], s[0:1], 16")
    load_ptr(a, 100, "B_x")
    load_ptr(a, 62, "dbg")
    S_W, S_RG, S_T = 42, 43, 64
    VL = 4
    lane_wave(a, VL, S_W)
    S_X, S_J = 65, 66
    a(f"s_and_b32 s{S_X}, s2, 7")
    a(f"s_lshr_b32 s{S_J}, s2, 3")
    S_TM, S_TN, S_MB, S_HD = 67, 68, 69, 70
    a(f"s_lshl_b32 s{S_TM}, s{S_X}, 1")
    a(f"s_lshr_b32 s{S_T}, s{S_J}, 4")
    a(f"s_add_u32 s{S_TM}, s{S_TM}, s{S_T}")
    a(f"s_and_b32 s{S_TN}, s{S_J}, 15")
    a(f"s_and_b32 s{S_MB}, s{S_W}, 3")
    a(f"s_bfe_u32 s{S_HD}, s{S_W}, 0x10002")
    a(f"s_lshl_b32 s{S_RG}, s{S_TM}, 2")
    a(f"s_add_u32 s{S_RG}, s{S_RG}, s{S_MB}")
    a(f"s_lshl_b32 s{S_RG}, s{S_RG}, 5")
    a(f"s_lshl_b32 s{S_T}, s{S_TN}, 1")
    a(f"s_add_u32 s{S_RG}, s{S_RG}, s{S_T}")
    a(f"s_add_u32 s{S_RG}, s{S_RG}, s{S_HD}")
    a(f"s_lshl_b32 s{S_RG}, s{S_RG}, 11")
    V16 = 5
    APREV, ACUR, ANEXT = 6, 7, 8
    VM, VLS = 9, 10
    Q = 12
    ONES = 20
    LT = 24
    KF = 28
    VF = 36
    P = [44, 52]
    CM = 64
    S = [80, 96]
    O = 112
    T = 128
    R = 144
    NV = 168
    a(f"v_lshlrev_b32 v{V16}, 4, v{VL}")
    S_LW, S_SRC, S_SLOT = 44, 45, 46
    a(f"s_lshl_b32 s{S_LW}, s{S_W}, 11")
    a("s_waitcnt lgkmcnt(0)")
    SWS, SKV, SD, SP = 32, 36, 16, 20
    make_srd(a, SWS, 14, WS_SIZE)
    make_srd(a, SKV, 14, 256 << 10, add=WS_KV)
    S_CLS, S_ST, S_ET = 50, 51, 52
    a(f"s_bfe_u32 s53, s{S_X}, 0x10001")
    a(f"s_lshl_b32 s{S_CLS}, s53, 2")
    a(f"s_lshr_b32 s53, s{S_X}, 2")
    a(f"s_lshl_b32 s53, s53, 1")
    a(f"s_add_u32 s{S_CLS}, s{S_CLS}, s53")
    a(f"s_and_b32 s53, s{S_X}, 1")
    a(f"s_add_u32 s{S_CLS}, s{S_CLS}, s53")
    sdiv(a, S_ST, S_J, 3, S_T)
    a(f"s_mul_i32 s54, s{S_ST}, 3")
    a(f"s_sub_u32 s{S_ET}, s{S_J}, s54")
    QST = 24576
    RS = [72, 73, 74, 75]; S_KK = 71
    pipe = Pipe(a, 4, QST, RS)
    SXX, SWQ = 24, 28
    VX, VW = 40, 44
    S_XB, S_WB, S_LX, S_LWQ = 58, 59, 60, 61
    groups = [
        Group(SXX, S_XB, 7, S_LX, [(VX + p, p * 1024) for p in range(4)]),
        Group(SWQ, S_WB, 17, S_LWQ, [(VW + p, 16384 + p * 1024) for p in range(2)]),
    ]
    QB, QA, QF, QACC = 128, 133, 64, 96
    qfrags = [
        Frag('b128', lambda u: (u, 0), [QF + 8*u for u in range(4)]),
        Frag('tr', lambda u: (4, 16384 + (16*u) * 128, 16384 + (16*u + 4) * 128), [QF + 4 + 8*u for u in range(4)]),
    ]
    qph = Phase(16, S_KK, groups, qfrags, [(QACC, 1, 0)], list(range(QB, QB + 5)), list(range(QA, QA + 5)))
    def ann(v):
        a(f"v_mov_b32 v{v+1}, 0")
        a(f"global_load_dword v{v}, v{v+1}, s[62:63] sc0 sc1")
    def flag(ph):
        a("s_and_b32 s3, s2, 15")
        a("s_lshl_b32 s3, s3, 7")
        a(f"s_lshr_b32 s{S_T}, s2, 4")
        a(f"s_add_u32 s3, s3, s{S_T}")
        a("v_mov_b32 v1, s3")
        a("v_mov_b32 v2, 1")
        a("s_mov_b64 exec, 1")
        a(f"buffer_store_byte v2, v1, s[{SWS}:{SWS+3}], 0 offen offset:{ph*2048} sc0 sc1")
        a("s_mov_b64 exec, -1")
    def setdw(val):
        a(f"v_mov_b32 v1, {DW}")
        a(f"v_mov_b32 v2, {val}")
        a(f"ds_write_b32 v1, v2")
        a("s_waitcnt lgkmcnt(0)")
    def fb_bars():
        L = a.label("fbb")
        a("s_barrier")
        a(f"s_mov_b32 s49, 0")
        a(f"{L}:")
        a("s_barrier")
        a("s_barrier")
        a(f"s_add_u32 s49, s49, 1")
        a(f"s_cmp_lt_u32 s49, 256")
        a(f"s_cbranch_scc1 {L}")
        a("s_barrier")
    Lcomp = a.label("comp")
    a(f"s_cmp_lt_u32 s{S_W}, 8")
    a(f"s_cbranch_scc1 {Lcomp}")
    make_srd(a, SXX, 96, 4 << 20)
    make_srd(a, SWQ, 98, 2 << 20)
    for p in range(4):
        rm_voff(a, VX + p, VL, p & 1, pitch_log2=11)
        if p:
            a(f"v_add_u32 v{VX+p}, {p*8*2048}, v{VX+p}")
    kn_voff(a, VW, VL, 11)
    a(f"v_add_u32 v{VW+1}, {8*2048}, v{VW}")
    a(f"s_lshl_b32 s{S_XB}, s{S_TM}, 18")
    a(f"s_lshl_b32 s{S_T}, s{S_MB}, 16")
    a(f"s_add_u32 s{S_XB}, s{S_XB}, s{S_T}")
    a(f"s_lshl_b32 s{S_WB}, s{S_TN}, 7")
    a(f"s_lshl_b32 s{S_T}, s{S_MB}, 15")
    a(f"s_add_u32 s{S_WB}, s{S_WB}, s{S_T}")
    a(f"s_lshl_b32 s{S_LX}, s{S_MB}, 12")
    a(f"s_add_u32 s{S_LX}, s{S_LX}, {S1_BASE}")
    a(f"s_lshl_b32 s{S_LWQ}, s{S_MB}, 11")
    a(f"s_add_u32 s{S_LWQ}, s{S_LWQ}, {S1_BASE}")
    a(f"s_lshr_b32 s{S_KK}, s{S_J}, 4")
    a(f"s_lshl_b32 s{S_KK}, s{S_KK}, 3")
    a(f"s_add_u32 s{S_KK}, s{S_KK}, s{S_J}")
    a(f"s_and_b32 s{S_KK}, s{S_KK}, 15")
    if ABL & 512: a(f"s_mov_b32 s{S_KK}, 0")
    a(f"s_mov_b32 s{pipe.S_SL}, 0")
    LDR = int(os.environ.get("LDR", "4"))
    for _ in range(LDR): pipe.issue(qph)
    if LDR == 2:
        a("s_waitcnt vmcnt(6)")
        for _ in range(2): pipe.issue(qph)
    if LDR == 3:
        a("s_waitcnt vmcnt(12)")
        pipe.issue(qph)
    a("s_barrier")
    a("s_waitcnt vmcnt(18)")
    a("s_barrier")
    a("s_waitcnt vmcnt(12)")
    a("s_barrier")
    pipe.loader_loop(qph, 6, 6)
    Lw8 = a.label("w8")
    a(f"s_cmp_eq_u32 s{S_W}, 8")
    a(f"s_cbranch_scc1 {Lw8}")
    pipe.loader_loop(qph, 6, 6)
    pipe.loader_tail(6)
    make_srd(a, SBX, 100, 4 << 20)
    a(f"s_sub_u32 s53, s{S_W}, 9")
    a(f"s_lshl_b32 s53, s53, 5")
    a(f"s_add_u32 s53, s53, s{S_J}")
    a(f"s_cmp_lt_u32 s53, {NUNITS_X - 288}")
    a(f"s_cselect_b64 s[{EX}:{EX+1}], -1, 0")
    a(f"s_mul_i32 s{S_U}, s{S_X}, {NUNITS_X}")
    a(f"s_add_u32 s{S_U}, s{S_U}, s53")
    for i in range(1, 4):
        a(f"s_add_u32 s{S_U+i}, s{S_U}, {96*i}")
    Lb0, Lb1 = a.label("b0"), a.label("b1")
    a(f"{Lb0}:")
    a("s_barrier")
    a(f"v_mov_b32 v1, {DW}")
    a(f"ds_read_b32 v2, v1")
    a("s_waitcnt lgkmcnt(0)")
    a("v_readfirstlane_b32 s3, v2")
    a("s_cmp_eq_u32 s3, 0")
    a(f"s_cbranch_scc1 {Lb1}")
    fb_bars()
    a(f"s_branch {Lb0}")
    a(f"{Lb1}:")
    wv = {2: 32, 3: 40, 4: 32, 5: 16}
    for it in range(6):
        if it < 4: fold_loads(a, it, VL)
        if it >= 2:
            a(f"s_waitcnt vmcnt({wv[it]})")
            fold_compute(a, it - 2, SWS)
        if it == 5:
            a("s_mov_b64 exec, -1")
            ann(56)
            a("s_barrier")
            a("s_waitcnt vmcnt(0)")
        a("s_barrier")
    Ls1 = a.label("s1w")
    a(f"s_cmp_lg_u32 s{S_W}, 9")
    a(f"s_cbranch_scc1 {Ls1}")
    a("v_readfirstlane_b32 s3, v56")
    a("s_cmp_lg_u32 s3, 1")
    a(f"s_cbranch_scc1 {Ls1}")
    flag(1)
    a(f"{Ls1}:")
    a(f"s_cmp_ge_u32 s{S_J}, 27")
    a(f"s_cbranch_scc1 {Lend}")
    a(f"s_sub_u32 s54, s{S_W}, 9")
    rm_frag_addr(a, 6, VL)
    a(f"s_lshl_b32 s56, s54, 12")
    a(f"s_add_u32 s56, s56, {S1_BASE + 8192}")
    SA, SF, SC0 = 12, 64, 112
    for u in range(4):
        a(f"v_xor_b32 v7, {u*32}, v6")
        a(f"v_add_u32 v{SA+u}, {S1_BASE}, v7")
        a(f"v_add_u32 v{SA+4+u}, s56, v7")
    a(f"s_mul_i32 s55, s{S_CLS}, {G_CLS}")
    a(f"s_mul_i32 s56, s{S_ET}, 3")
    a(f"s_add_u32 s56, s56, s54")
    a(f"s_mul_i32 s56, s56, {G_EB}")
    a(f"s_add_u32 s55, s55, s56")
    a(f"s_lshl_b32 s56, s{S_ST}, 12")
    a(f"s_add_u32 s55, s55, s56")
    a(f"s_add_u32 s55, s55, {WS_G}")
    for _ in range(4): a("s_barrier")
    for k in range(5):
        a("s_barrier")
        for u in range(4):
            a(f"ds_read_b128 {vr(SF+12*u,4)}, v{SA+4+u}")
            a(f"ds_read_b128 {vr(SF+12*u+4,4)}, v{SA+u}")
            a(f"ds_read_b128 {vr(SF+12*u+8,4)}, v{SA+u} offset:4096")
        for u in range(4):
            a(f"s_waitcnt lgkmcnt({9-3*u})")
            for sb in range(2):
                a(mfma32(SC0+16*sb, SF+12*u+4+4*sb, SF+12*u, "0" if (k == 0 and u == 0) else None))
        if k < 4:
            for i in range(8): a(f"v_add_u32 v{SA+i}, {S1_STG}, v{SA+i}")
    a("s_nop 15")
    for sb in range(2):
        R1 = 24 + 8*sb
        pack16(a, R1, SC0 + 16*sb)
        swap_natural(a, R1)
        a(f"buffer_store_dwordx4 {vr(R1,4)}, v{V16}, s[{SWS}:{SWS+3}], s55 offen offset:{2048*sb}")
        a(f"buffer_store_dwordx4 {vr(R1+4,4)}, v{V16}, s[{SWS}:{SWS+3}], s55 offen offset:{2048*sb+1024}")
    a(f"s_branch {Lend}")
    a(f"{Lw8}:")
    a(f"v_lshrrev_b32 v31, 2, v{VL}")
    a(f"v_and_b32 v30, 3, v{VL}")
    a(f"v_lshlrev_b32 v30, 2, v30")
    a(f"v_lshl_add_u32 v31, v31, 7, v30")
    def poll(ph):
        a(f"buffer_load_dword v30, v31, s[{SWS}:{SWS+3}], 0 offen offset:{ph*2048} sc0 sc1")
    def check():
        a(f"v_mul_lo_u32 v30, v30, v28")
        a(f"v_cmp_eq_u32 vcc, 0x01010101, v30")
        a("s_nop 3")
        a(f"s_cmp_eq_u64 vcc, -1")
        if FORCE_FB: a("s_cmp_eq_u32 s2, 0x7777")
    a("s_waitcnt vmcnt(6)")
    a("s_barrier")
    pipe.issue(qph)
    ann(28)
    for _ in range(2):
        a("s_waitcnt vmcnt(7)")
        a("s_barrier")
        pipe.issue(qph)
    def kv01(lo=0, hi=32):
        for pp in range(lo, hi):
            a(f"s_mov_b32 m0, {pp*1024}")
            a(f"s_add_u32 s{S_T}, s53, {pp*1024}")
            a(f"buffer_load_dwordx4 v{V16}, s[{SKV}:{SKV+3}], s{S_T} offen lds")
    a("s_waitcnt vmcnt(6)")
    a("s_barrier")
    pipe.issue(qph)
    poll(0)
    a("s_waitcnt vmcnt(7)")
    a("s_barrier")
    pipe.issue(qph)
    a("s_waitcnt vmcnt(7)")
    a("s_barrier")
    pipe.issue(qph)
    a("s_waitcnt vmcnt(12)")
    check()
    a(f"s_cselect_b32 s53, 0, 0x40000000")
    a(f"s_cselect_b64 exec, 0, -1")
    poll(0)
    a(f"s_mov_b64 exec, -1")
    kv01(0, 16)
    a("s_waitcnt vmcnt(23)")
    a("s_barrier")
    kv01(16, 32)
    a("s_waitcnt vmcnt(33)")
    a("s_barrier")
    Lok, Lpl, Lgo = a.label("fok"), a.label("fpl"), a.label("fgo")
    a(f"s_cmp_eq_u32 s53, 0")
    a(f"s_cbranch_scc1 {Lok}")
    def spin(m):
        Lp, Lg = a.label("spl"), a.label("spg")
        a(f"s_mov_b32 s49, 0")
        a(f"s_mov_b32 s48, 0")
        a(f"{Lp}:")
        Lsk = a.label("spa")
        a("v_readfirstlane_b32 s3, v28")
        a("s_cmp_eq_u32 s3, 1")
        a(f"s_cbranch_scc1 {Lsk}")
        ann(28)
        a("s_waitcnt vmcnt(0)")
        a(f"{Lsk}:")
        poll(m)
        a(f"s_add_u32 s49, s49, 1")
        a("s_waitcnt vmcnt(0)")
        check()
        a(f"s_cbranch_scc1 {Lg}")
        a("s_sleep 6")
        a(f"s_cmp_lt_u32 s49, {SPIN_LIMIT}")
        a(f"s_cbranch_scc1 {Lp}")
        a(f"s_mov_b32 s48, 1")
        a(f"{Lg}:")
    a("s_waitcnt vmcnt(0)")
    check()
    a(f"s_cbranch_scc1 {Lgo}")
    spin(0)
    a(f"s_cmp_eq_u32 s48, 0")
    a(f"s_cbranch_scc1 {Lgo}")
    setdw(1)
    a("s_barrier")
    fb_bars()
    a(f"{Lgo}:")
    a(f"s_mov_b32 s53, 0")
    kv01()
    a(f"{Lok}:")
    setdw(0)
    a(f"s_cmp_lt_u32 s{S_CLS}, 4")
    a(f"s_cselect_b32 s{SD}, s4, s6")
    a(f"s_cselect_b32 s{SD+1}, s5, s7")
    a(f"s_mov_b32 s{SD+2}, {2<<20}")
    a(f"s_mov_b32 s{SD+3}, 0x20000")
    for par in range(2):
        rm_voff(a, 12 + par, VL, par, pitch=F_PITCH)
        rm_voff(a, 14 + par, VL, par, pitch_log2=12)
    a(f"s_mul_i32 s54, s{S_CLS}, {F_CLS}")
    a(f"s_mul_i32 s55, s{S_ST}, {64*F_PITCH}")
    a(f"s_add_u32 s54, s54, s55")
    a(f"s_add_u32 s54, s54, {WS_F}")
    a(f"s_mul_i32 s55, s{S_ET}, {96*4096}")
    a(f"s_and_b32 s56, s{S_CLS}, 1")
    a(f"s_lshl_b32 s56, s56, 11")
    a(f"s_add_u32 s55, s55, s56")
    a(f"s_cmp_ge_u32 s{S_J}, 27")
    a(f"s_cselect_b32 s54, 0x40000000, s54")
    a(f"s_cselect_b32 s55, 0x40000000, s55")
    a(f"s_mov_b32 s56, {S1_BASE}")
    a(f"s_mov_b32 s{S_SRC}, {2*16384}")
    a(f"s_mov_b32 s{S_SLOT}, {2*16384}")
    a("s_waitcnt vmcnt(16)")
    a("s_barrier")
    a("s_waitcnt vmcnt(0)")
    def refill():
        for pp in range(16):
            a(f"s_add_u32 m0, s{S_SLOT}, {pp*1024}")
            a(f"s_add_u32 s{S_T}, s{S_SRC}, {pp*1024}")
            a(f"buffer_load_dwordx4 v{V16}, s[{SKV}:{SKV+3}], s{S_T} offen lds")
        a(f"s_add_u32 s{S_SRC}, s{S_SRC}, 16384")
        a(f"s_add_u32 s{S_SLOT}, s{S_SLOT}, 16384")
        a(f"s_cmp_eq_u32 s{S_SLOT}, {3*16384}")
        a(f"s_cselect_b32 s{S_SLOT}, 0, s{S_SLOT}")
    make_srd(a, SP, 12, 2 << 20)
    a(f"s_lshl_b32 s53, s{S_J}, 16")
    a(f"v_lshlrev_b32 v20, 6, v{VL}")
    a(f"s_bfe_u32 s57, s{S_X}, 0x10001")
    a(f"s_mul_i32 s57, s57, 320")
    a(f"s_mul_i32 s49, s{S_J}, 10")
    a(f"s_add_u32 s57, s57, s49")
    a(f"s_lshl_b32 s57, s57, 13")
    a(f"s_lshr_b32 s49, s{S_X}, 2")
    a(f"s_lshl_b32 s49, s49, 12")
    a(f"s_add_u32 s57, s57, s49")
    a(f"s_mov_b32 s49, {hex((1<<32)//18+1)}")
    for h in range(3):
        a(f"v_add_u32 v1, {64*h}, v{VL}")
        a(f"v_min_u32 v1, 179, v1")
        a(f"v_mul_hi_u32 v2, v1, s49")
        a(f"v_mul_u32_u24 v3, 18, v2")
        a(f"v_sub_u32 v1, v1, v3")
        a(f"v_lshlrev_b32 v1, 6, v1")
        a(f"v_lshl_add_u32 v{16+h}, v2, 13, v1")
    def s1loads():
        for p in range(8):
            a(f"s_add_u32 m0, s56, {p*1024}")
            a(f"s_add_u32 s{S_T}, s54, {p*8*F_PITCH}")
            a(f"buffer_load_dwordx4 v{12+(p&1)}, s[{SWS}:{SWS+3}], s{S_T} offen lds")
        for p in range(12):
            a(f"s_add_u32 m0, s56, {8192+p*1024}")
            a(f"s_add_u32 s{S_T}, s55, {p*8*4096}")
            a(f"buffer_load_dwordx4 v{14+(p&1)}, s[{SD}:{SD+3}], s{S_T} offen lds")
        a(f"s_add_u32 s54, s54, 128")
        a(f"s_add_u32 s55, s55, 128")
        a(f"s_add_u32 s56, s56, {S1_STG}")
    def wotouch():
        a(f"buffer_load_dword v21, v20, s[{SP}:{SP+3}], s53 offen")
        a(f"s_add_u32 s53, s53, 4096")
        a(f"buffer_load_dword v22, v20, s[{SP}:{SP+3}], s53 offen")
        a(f"s_add_u32 s53, s53, 4096")
    a(f"s_mov_b32 s47, 0")
    L2 = a.label("ld2")
    a(f"{L2}:")
    a("s_barrier")
    refill()
    wotouch()
    a(f"s_add_u32 s47, s47, 1")
    a(f"s_cmp_lt_u32 s47, 8")
    a("s_waitcnt vmcnt(2)")
    a(f"s_cbranch_scc1 {L2}")
    SP2 = 24
    make_srd(a, SP, 8, 8 << 20)
    make_srd(a, SP2, 10, 8 << 20)
    def seqtouch(h):
        a(f"buffer_load_dword v21, v{16+h}, s[{SP}:{SP+3}], s57 offen")
        a(f"buffer_load_dword v22, v{16+h}, s[{SP2}:{SP2+3}], s57 offen")
    a("s_barrier")
    refill()
    seqtouch(0)
    poll(1)
    a("s_waitcnt vmcnt(3)")
    a("s_barrier")
    refill()
    a("s_waitcnt vmcnt(16)")
    check()
    Lk2 = a.label("ok2")
    a(f"s_cbranch_scc1 {Lk2}")
    spin(1)
    a(f"s_cmp_eq_u32 s48, 0")
    a(f"s_cbranch_scc1 {Lk2}")
    a(f"s_cmp_ge_u32 s{S_J}, 27")
    a(f"s_cbranch_scc1 {Lk2}")
    a("s_mov_b32 s40, s54")
    a("s_mov_b32 s41, s55")
    make_srd(a, SBX, 100, 4 << 20)
    a(f"s_mul_i32 s48, s{S_ST}, 320")
    a("s_mov_b32 s47, 0")
    Lff = a.label("ffb")
    a(f"{Lff}:")
    a(f"s_add_u32 s{S_U}, s48, s47")
    fold_loads(a, 0, VL)
    a("s_waitcnt vmcnt(0)")
    fold_compute(a, 0, SWS)
    a("s_add_u32 s47, s47, 1")
    a("s_cmp_lt_u32 s47, 320")
    a(f"s_cbranch_scc1 {Lff}")
    a("s_waitcnt vmcnt(0)")
    a("s_mov_b32 s54, s40")
    a("s_mov_b32 s55, s41")
    make_srd(a, SP, 8, 8 << 20)
    a(f"{Lk2}:")
    s1loads()
    a(f"s_mov_b32 s47, 0")
    L1 = a.label("ld1")
    a(f"{L1}:")
    a("s_waitcnt vmcnt(20)")
    a("s_barrier")
    refill()
    s1loads()
    a(f"s_add_u32 s47, s47, 1")
    a(f"s_cmp_lt_u32 s47, 4")
    a(f"s_cbranch_scc1 {L1}")
    a("s_waitcnt vmcnt(20)")
    a("s_barrier")
    seqtouch(1)
    seqtouch(2)
    a("s_waitcnt vmcnt(4)")
    a("s_barrier")
    a(f"s_branch {Lend}")
    a(f"{Lcomp}:")
    pre_part(a, VL, V16, S_W, S_X, S_J, S_T, SWS)
    rm_frag_addr(a, 6, VL)
    a(f"s_lshl_b32 s{S_T}, s{S_MB}, 12")
    a(f"s_add_u32 s{S_T}, s{S_T}, {S1_BASE}")
    a(f"v_add_u32 v6, s{S_T}, v6")
    for u in range(4):
        a(f"v_xor_b32 v{QB+u}, {u*32}, v6")
    kn_frag_addr(a, QB + 4, VL, S_HD, False)
    a(f"v_add_u32 v{QB+4}, {S1_BASE}, v{QB+4}")
    pre_bar = None
    a(f"s_mov_b32 s47, 0")
    a(f"s_cmp_eq_u32 s{S_W}, 7")
    a(f"s_cselect_b32 s48, {FLAG_STEP}, 99")
    def post_bar():
        Lx, Ly, Lz = a.label("nfx"), a.label("nfy"), a.label("nfz")
        a(f"s_cmp_lt_u32 s{pipe.S_CNT}, s48")
        a(f"s_cbranch_scc1 {Lx}")
        a(f"s_cbranch_scc0 {Ly}")
        a(f"{Ly}:")
        a(f"s_cmp_eq_u32 s47, 0")
        a(f"s_mov_b32 s47, 1")
        a(f"s_cbranch_scc1 {Lz}")
        a("s_waitcnt vmcnt(0)")
        a("v_readfirstlane_b32 s3, v56")
        a("s_cmp_lg_u32 s3, 1")
        a(f"s_cbranch_scc1 {Lz}")
        flag(0)
        a(f"s_mov_b32 s48, 99")
        a(f"s_branch {Lx}")
        a(f"{Lz}:")
        ann(56)
        a(f"s_add_u32 s48, s{pipe.S_CNT}, {int(os.environ.get('FGAP', '3'))}")
        a(f"{Lx}:")
    pipe.compute(qph, True, pre_bar=pre_bar, post_bar=post_bar)
    mark(a, 3)
    cq = (32 ** -0.5) * math.log2(math.e)
    a(f"s_mov_b32 s{S_T}, {hex(f32bits(cq))}")
    a("s_nop 9")
    pack16(a, Q, QACC, S_T)
    Linit, Lfb = a.label("init"), a.label("fb")
    a(f"{Linit}:")
    a(f"v_add_u32 v{APREV}, {2*16384}, v{V16}")
    a(f"v_mov_b32 v{ACUR}, v{V16}")
    a(f"v_add_u32 v{ANEXT}, 16384, v{V16}")
    a(f"v_mov_b32 v{VLS}, 0")
    for r in range(16):
        a(f"v_mov_b32 v{O+r}, 0")
    for r in range(8):
        a(f"v_mov_b32 v{P[1]+r}, 0")
        a(f"v_mov_b32 v{VF+r}, 0")
    for r in range(4):
        a(f"v_mov_b32 v{LT+r}, 0")
    a(f"v_bfe_u32 v1, v{VL}, 4, 1")
    a(f"v_bfe_u32 v2, v{VL}, 2, 1")
    a(f"v_cmp_eq_u32 vcc, v1, v2")
    a(f"v_mov_b32 v1, 0x3f803f80")
    a("s_nop 1")
    for r in range(4):
        a(f"v_cndmask_b32 v{ONES+r}, 0, v1, vcc")
    S_TH = 48
    a(f"s_mov_b32 s{S_TH}, {hex(f32bits(THRESH))}")
    a("s_waitcnt vmcnt(0)")
    a("s_barrier")
    mark(a, 1)
    a(f"ds_read_b128 {vr(KF,4)}, v{ACUR}")
    a(f"ds_read_b128 {vr(KF+4,4)}, v{ACUR} offset:1024")
    a(f"v_mov_b32 v1, {DW}")
    a(f"ds_read_b32 v2, v1")
    a("s_waitcnt lgkmcnt(0)")
    a("v_readfirstlane_b32 s3, v2")
    a("s_cmp_lg_u32 s3, 0")
    a(f"s_cbranch_scc1 {Lfb}")
    a(mfma32(S[0], KF, Q, "0"))
    a(mfma32(S[0], KF+4, Q+4))
    a(f"ds_read_b128 {vr(KF,4)}, v{ACUR} offset:4096")
    a(f"ds_read_b128 {vr(KF+4,4)}, v{ACUR} offset:{4096+1024}")
    S_C = 47
    a(f"s_mov_b32 s{S_C}, 0")
    a("s_nop 11")
    def rowmax(X):
        a(f"v_max3_f32 v1, v{X}, v{X+1}, v{X+2}")
        for r in range(3, 15, 2):
            a(f"v_max3_f32 v1, v1, v{X+r}, v{X+r+1}")
        a(f"v_max_f32 v1, v1, v{X+15}")
        a(f"v_mov_b32 v2, v1")
        a("s_nop 1")
        a(f"v_permlane32_swap_b32 v1, v2")
        a("s_nop 1")
        a(f"v_max_f32 v1, v1, v2")
        a(f"v_add_f32 v1, {hex(f32bits(BIAS))}, v1")
    rowmax(S[0])
    a(f"v_mov_b32 v{VM}, v1")
    a(f"v_sub_f32 v3, 0, v1")
    for r in range(16):
        a(f"v_mov_b32 v{CM+r}, v3")
        a(f"v_sub_f32 v{S[0]+r}, v{S[0]+r}, v1")
    if TIMING:
        a("s_mov_b32 s83, 0")
    a("s_waitcnt lgkmcnt(0)")
    Lloop = a.label("loop")
    slow = []
    def kaddr(j):
        if j < 0: return APREV, (4 + j) * 4096
        if j < 4: return ACUR, j * 4096
        return ANEXT, (j - 4) * 4096
    def tile(j, final=False):
        p = j & 1
        Sc, Sn, Pc, Pp = S[p], S[1-p], P[p], P[1-p]
        e = lambda r: a(f"v_exp_f32 v{Sc+r}, v{Sc+r}")
        c = lambda r: a(f"v_cvt_pk_bf16_f32 v{Pc+r}, v{Sc+2*r}, v{Sc+2*r+1}")
        pre = []
        def pe(r): pre.append(f"v_exp_f32 v{Sc+r}, v{Sc+r}"); e(r)
        def pc(r): pre.append(f"v_cvt_pk_bf16_f32 v{Pc+r}, v{Sc+2*r}, v{Sc+2*r+1}"); c(r)
        if j == 2 and not final:
            a("s_barrier")
        if not (ABL & 64): a(f"s_setprio {3 - ((j + 2) & 3)}")
        Ls, Lr = a.label("slow"), a.label("ret")
        if final:
            a("s_waitcnt lgkmcnt(0)")
            a("s_nop 1")
            a(mfma16(LT, ONES, Pp+4))
            a("s_nop 7")
            a(f"v_cmp_nge_f32 vcc, s{S_TH}, v{LT}")
            a(f"s_cbranch_vccnz {Ls}")
            a(f"{Lr}:")
            slow.append((Ls, Lr, j, pre, final))
            a(mfma32(O, VF, Pp))
            a(f"v_add_f32 v{VLS}, v{VLS}, v{LT}")
            a(mfma32(O, VF+4, Pp+4))
            return
        a("s_waitcnt lgkmcnt(2)")
        a(mfma32(Sn, KF, Q, CM))
        pe(0); pe(1); pe(2)
        a(mfma16(LT, ONES, Pp+4))
        pe(3); pc(0); pe(4)
        a(mfma32(Sn, KF+4, Q+4))
        pe(5); pc(1); pe(6); pe(7)
        a(f"v_cmp_nge_f32 vcc, s{S_TH}, v{LT}")
        v, off = kaddr(j + 2)
        a(f"ds_read_b128 {vr(KF,4)}, v{v} offset:{off}")
        pc(2)
        a(f"ds_read_b128 {vr(KF+4,4)}, v{v} offset:{off+1024}")
        a("s_waitcnt lgkmcnt(2)")
        a(f"s_cbranch_vccnz {Ls}")
        a(f"{Lr}:")
        slow.append((Ls, Lr, j, pre, final))
        a(mfma32(O, VF, Pp))
        a(f"v_add_f32 v{VLS}, v{VLS}, v{LT}")
        e(8); e(9); c(3); e(10)
        a(mfma32(O, VF+4, Pp+4))
        e(11); c(4); e(12); e(13)
        a(mfma16(LT, ONES, Pc, "0"))
        a(f"ds_read_b128 {vr(VF,4)}, v{ACUR} offset:{j*4096+2048}")
        c(5)
        a(f"ds_read_b128 {vr(VF+4,4)}, v{ACUR} offset:{j*4096+3072}")
        e(14); e(15); c(6); c(7)
    a(f"{Lloop}:")
    for j in range(4):
        tile(j)
    a(f"v_mov_b32 v1, v{APREV}")
    a(f"v_mov_b32 v{APREV}, v{ACUR}")
    a(f"v_mov_b32 v{ACUR}, v{ANEXT}")
    a(f"v_mov_b32 v{ANEXT}, v1")
    a(f"s_add_u32 s{S_C}, s{S_C}, 1")
    a(f"s_cmp_lt_u32 s{S_C}, 16")
    a(f"s_cbranch_scc1 {Lloop}")
    tile(0, final=True)
    a(f"v_rcp_f32 v1, v{VLS}")
    a("s_nop 11")
    for r in range(16):
        a(f"v_mul_f32 v{O+r}, v{O+r}, v1")
    pack16(a, T, O)
    a(f"s_add_u32 s{S_T}, s{S_RG}, {WS_O}")
    a(f"buffer_store_dwordx4 {vr(T,4)}, v{V16}, s[{SWS}:{SWS+3}], s{S_T} offen")
    a(f"buffer_store_dwordx4 {vr(T+4,4)}, v{V16}, s[{SWS}:{SWS+3}], s{S_T} offen offset:1024")
    mark(a, 2)
    stamp_end(a)
    dump_marks(a)
    a(f"{Lend}:")
    a("s_endpgm")
    a(f"{Lfb}:")
    a("s_barrier")
    a("s_mov_b32 s74, 0")
    Lfl = a.label("fbl")
    a(f"{Lfl}:")
    a("s_and_b32 s72, s74, 7")
    a("s_lshr_b32 s73, s74, 3")
    pre_part(a, VL, V16, S_W, 72, 73, S_T, SWS, lead=False)
    a("s_waitcnt lgkmcnt(0)")
    a("s_barrier")
    a("s_add_u32 s74, s74, 1")
    a("s_cmp_lt_u32 s74, 256")
    a(f"s_cbranch_scc1 {Lfl}")
    a("s_waitcnt vmcnt(0)")
    a("s_barrier")
    a(f"s_branch {Linit}")
    for (Ls, Lr, j, pre, final) in slow:
        p = j & 1
        Sc, Sn, Pc, Pp = S[p], S[1-p], P[p], P[1-p]
        a(f"{Ls}:")
        if TIMING: a("s_add_u32 s83, s83, 1")
        def rdk(jj):
            v, off = kaddr(jj)
            a(f"ds_read_b128 {vr(T,4)}, v{v} offset:{off}")
            a(f"ds_read_b128 {vr(T+4,4)}, v{v} offset:{off+1024}")
            a("s_waitcnt lgkmcnt(0)")
        rdk(j - 1)
        a(mfma32(R, T, Q, "0"))
        a(mfma32(R, T+4, Q+4))
        a("s_nop 15")
        rowmax(R)
        a(f"v_max_f32 v1, v1, v{VM}")
        a(f"v_sub_f32 v2, v{VM}, v1")
        a(f"v_mul_f32 v2, 0.5, v2")
        a(f"v_exp_f32 v2, v2")
        a(f"v_mov_b32 v{VM}, v1")
        a(f"v_sub_f32 v3, 0, v1")
        for r in range(16):
            a(f"v_mul_f32 v{O+r}, v{O+r}, v2")
            a(f"v_mov_b32 v{CM+r}, v3")
            a(f"v_mul_f32 v{O+r}, v{O+r}, v2")
            a(f"v_sub_f32 v{R+r}, v{R+r}, v1")
        a(f"v_mul_f32 v{VLS}, v{VLS}, v2")
        a(f"v_mul_f32 v{VLS}, v{VLS}, v2")
        for r in range(16):
            a(f"v_exp_f32 v{R+r}, v{R+r}")
        a("s_nop 0")
        for r in range(8):
            a(f"v_cvt_pk_bf16_f32 v{Pp+r}, v{R+2*r}, v{R+2*r+1}")
        a("s_nop 1")
        a(mfma16(LT, ONES, Pp, "0"))
        a(mfma16(LT, ONES, Pp+4))
        if not final:
            rdk(j)
            a(mfma32(Sc, T, Q, CM))
            a(mfma32(Sc, T+4, Q+4))
            a("s_nop 7")
            rdk(j + 1)
            a(mfma32(Sn, T, Q, CM))
            a(mfma32(Sn, T+4, Q+4))
        a("s_nop 15")
        for s in pre:
            a("s_nop 0")
            a(s)
        a("s_nop 1")
        a(f"s_branch {Lr}")
    kernel_end(a, name, NV, sgpr=102)
```

```python
from common import *
from gemm import *
from k_qkv import krot
from k_fnet import sdiv, s2_epilogue, s2_epilogue2

OP_SLOTS = 5
OP_SLOT = 32768
OP_LDS = OP_SLOTS * OP_SLOT
S2_UNITS = 162

def gen_out(a, name):
    kernel_begin(a, name)
    Lend = a.label("end"); Lcomp = a.label("comp")
    a(f"s_cmp_ge_u32 s2, 256")
    a(f"s_cbranch_scc1 {Lend}")
    stamp_begin(a)
    load_ptr(a, 6, "wo"); load_ptr(a, 12, "out"); load_ptr(a, 14, "ws")
    a("s_load_dwordx4 s[8:11], s[0:1], 48")
    S_TM, S_TN, S_W, S_WM, S_WN = 40, 41, 42, 43, 44
    a(f"s_and_b32 s46, s2, 7")
    a(f"s_lshr_b32 s45, s2, 3")
    a(f"s_lshl_b32 s{S_TM}, s46, 1")
    a(f"s_lshr_b32 s47, s45, 4")
    a(f"s_add_u32 s{S_TM}, s{S_TM}, s47")
    a(f"s_and_b32 s{S_TN}, s45, 15")
    VL = 4
    lane_wave(a, VL, S_W)
    RS = [64, 65, 66, 67]; S_KK, S_KK2 = 68, 69
    S_T = RS[2]
    pipe = Pipe(a, OP_SLOTS, OP_SLOT, RS)
    VX, VW = 8, 12
    VY = 152
    S_XB, S_WB, S_LX, S_LW = 58, 59, 61, 62
    SD, SW, SO, SWS = 16, 20, 28, 32
    S_CA, S_TT, S_EB = 48, 49, 50
    S_AB, S_GB = 53, 54
    VW8 = 136
    groups = [
        Group(SW, S_WB, 19, S_LW, [(VW8 + p, p * 1024) for p in range(8)]),
    ]
    VB, VA = 16, 26
    FR = 40
    ACC = 104
    ph1 = Phase(4, S_KK, groups, [], [], [VB, VB + 1], [VA, VA + 1])
    groups2 = [
        Group(SD, S_AB, 7, S_LX, [(VY + p, p * 1024) for p in range(4)]),
        Group(SWS, S_GB, 12, S_LX, [(VX + p, 16384 + p * 1024) for p in range(4)]),
    ]
    frags2 = [
        Frag('b128', lambda u: (u, 0), [FR + 16*u for u in range(4)]),
        Frag('b128', lambda u: (u, 8192), [FR + 4 + 16*u for u in range(4)]),
        Frag('b128', lambda u: (4, 16384 + u * 1024), [FR + 8 + 16*u for u in range(4)]),
        Frag('b128', lambda u: (4, 16384 + 8192 + u * 1024), [FR + 12 + 16*u for u in range(4)]),
    ]
    mf2 = [(ACC, 0, 2), (ACC + 16, 1, 3)]
    VB2 = 18
    ph2 = Phase(9, S_KK2, groups2, frags2, mf2, list(range(VB2, VB2 + 5)), list(range(VA, VA + 5)))
    a(f"s_cmp_lt_u32 s{S_W}, 4")
    a(f"s_cselect_b32 s47, 1, 0")
    a(f"s_and_b32 s{S_W}, s{S_W}, 3")
    a(f"s_lshr_b32 s{S_WM}, s{S_W}, 1")
    a(f"s_and_b32 s{S_WN}, s{S_W}, 1")
    a(f"v_lshlrev_b32 v{VX}, 4, v{VL}")
    S_OK = 60
    a(f"s_lshr_b32 s{S_CA}, s46, 2")
    a(f"s_and_b32 s51, s46, 1")
    a(f"s_sub_u32 s52, 5, s51")
    a(f"s_mov_b32 s{S_T}, {hex((1<<32)//4+1)}")
    a(f"s_cmp_eq_u32 s51, 0")
    a(f"s_cselect_b32 s{S_T}, {hex((1<<32)//5+1)}, s{S_T}")
    a(f"s_mul_hi_u32 s{S_TT}, s45, s{S_T}")
    a(f"s_mul_i32 s{S_T}, s{S_TT}, s52")
    a(f"s_sub_u32 s{S_EB}, s45, s{S_T}")
    a(f"s_mul_i32 s51, s51, 5")
    a(f"s_add_u32 s{S_EB}, s{S_EB}, s51")
    a(f"s_bfe_u32 s51, s46, 0x10001")
    a(f"s_sub_u32 s52, 5, s51")
    a(f"s_cmp_lt_u32 s{S_TT}, s52")
    a(f"s_cselect_b32 s{S_OK}, 1, 0")
    a(f"s_mul_i32 s51, s51, 5")
    a(f"s_add_u32 s{S_TT}, s{S_TT}, s51")
    a(f"s_cmp_lg_u32 s47, 0")
    a(f"s_cbranch_scc1 {Lcomp}")
    a(f"s_mov_b32 s{S_KK}, 0")
    for p in range(1, 4):
        a(f"v_add_u32 v{VX+p}, {p*1024}, v{VX}")
    kn_voff(a, VW8, VL, 11)
    for p in range(1, 8):
        a(f"v_add_u32 v{VW8+p}, {p*8*2048}, v{VW8}")
    a(f"s_lshl_b32 s{S_WB}, s{S_TN}, 7")
    a(f"s_lshl_b32 s{S_T}, s{S_W}, 17")
    a(f"s_add_u32 s{S_WB}, s{S_WB}, s{S_T}")
    a(f"s_lshl_b32 s{S_LX}, s{S_W}, 12")
    a(f"s_lshl_b32 s{S_LW}, s{S_W}, 13")
    a("s_waitcnt lgkmcnt(0)")
    make_srd(a, SW, 6, 2 << 20)
    make_srd(a, SWS, 14, WS_SIZE)
    pipe.loader_prologue(ph1)
    a(f"s_cmp_lt_u32 s{S_W}, 2")
    a(f"s_cselect_b32 s{SD}, s8, s10")
    a(f"s_cselect_b32 s{SD+1}, s9, s11")
    a(f"s_mov_b32 s{SD+2}, {8<<20}")
    a(f"s_mov_b32 s{SD+3}, 0x20000")
    for p in range(4):
        rm_voff(a, VY + p, VL, p & 1, pitch_log2=13)
        if p:
            a(f"v_add_u32 v{VY+p}, {p*8*8192}, v{VY+p}")
    a(f"s_lshl_b32 s{S_AB}, s{S_TT}, 1")
    a(f"s_add_u32 s{S_AB}, s{S_AB}, s{S_WN}")
    a(f"s_lshl_b32 s{S_AB}, s{S_AB}, 18")
    a(f"s_lshl_b32 s{S_T}, s{S_CA}, 12")
    a(f"s_add_u32 s{S_AB}, s{S_AB}, s{S_T}")
    a(f"s_lshl_b32 s{S_GB}, s{S_WM}, 2")
    a(f"s_lshl_b32 s{S_T}, s{S_CA}, 1")
    a(f"s_add_u32 s{S_GB}, s{S_GB}, s{S_T}")
    a(f"s_add_u32 s{S_GB}, s{S_GB}, s{S_WN}")
    a(f"s_mul_i32 s{S_GB}, s{S_GB}, {G_CLS}")
    a(f"s_mul_i32 s{S_T}, s{S_EB}, {G_EB}")
    a(f"s_add_u32 s{S_GB}, s{S_GB}, s{S_T}")
    a(f"s_add_u32 s{S_GB}, s{S_GB}, {WS_G}")
    a(f"s_add_u32 s{S_KK2}, s{S_EB}, s{S_TT}")
    a(f"s_sub_u32 s{S_T}, s{S_KK2}, 9")
    a(f"s_cmp_ge_u32 s{S_KK2}, 9")
    a(f"s_cselect_b32 s{S_KK2}, s{S_T}, s{S_KK2}")
    Lt = a.label("ltail")
    a("s_waitcnt vmcnt(8)")
    a("s_barrier")
    pipe.issue(ph1)
    a("s_waitcnt vmcnt(8)")
    a("s_barrier")
    pipe.issue(ph1)
    a(f"s_cmp_eq_u32 s{S_OK}, 0")
    a(f"s_cbranch_scc1 {Lt}")
    pipe.issue(ph2)
    for j in range(2, 5):
        a("s_waitcnt vmcnt(16)")
        a("s_barrier")
        pipe.issue(ph2)
    a("s_barrier")
    pipe.loader_loop(ph2, 5, 16)
    pipe.loader_tail(8)
    a(f"s_branch {Lend}")
    a(f"{Lt}:")
    a("s_waitcnt vmcnt(8)")
    a("s_barrier")
    a("s_waitcnt vmcnt(0)")
    a("s_barrier")
    a(f"s_branch {Lend}")
    a(f"{Lcomp}:")
    a(f"s_mov_b32 s56, 0")
    kn_frag_addr(a, VB, VL, 56, True)
    a(f"v_xor_b32 v{VB+1}, 64, v{VB}")
    rm_frag_addr(a, 5, VL)
    a(f"s_lshl_b32 s{S_T}, s{S_WM}, 12")
    a(f"v_add_u32 v5, s{S_T}, v5")
    for u in range(4):
        a(f"v_xor_b32 v{VB2+u}, {u*32}, v5")
    a(f"s_lshl_b32 s{S_T}, s{S_WN}, 12")
    a(f"v_add_u32 v{VB2+4}, s{S_T}, v{VX}")
    a(f"s_cmp_eq_u32 s{S_OK}, 0")
    a(f"s_cselect_b32 s55, 3, 99")
    a(f"s_lshl_b32 s{S_XB}, s{S_TM}, 2")
    a(f"s_add_u32 s{S_XB}, s{S_XB}, s{S_W}")
    a(f"s_lshl_b32 s{S_XB}, s{S_XB}, 16")
    a(f"s_add_u32 s{S_XB}, s{S_XB}, {WS_O}")
    a("s_waitcnt lgkmcnt(0)")
    make_srd(a, SO, 12, 8 << 20)
    make_srd(a, SWS, 14, WS_O + (4 << 20))
    a(f"s_add_u32 s{SWS+2}, s{S_XB}, 65536")
    OF = 136
    NS = 16
    PD = int(os.environ.get('OPD', '11'))
    WF = FR
    def oload(i):
        a(f"buffer_load_dwordx4 {vr(OF+4*(i%NS),4)}, v{VX}, s[{SWS}:{SWS+3}], s{S_XB} offen offset:{(i%4)*1024}")
    def wreads(i):
        r = WF + 8*(i % 4)
        out = []
        for nb in range(2):
            for j in range(2):
                out.append(f"ds_read_b64_tr_b16 {vr(r+4*nb+2*j,2)}, v{VA+nb} offset:{(16*i+8*j)*128}")
        return out
    for i in range(PD):
        oload(i)
        if i % 4 == 3: a(f"s_add_u32 s{S_XB}, s{S_XB}, 4096")
    for r in range(32): a(f"v_mov_b32 v{ACC+r}, 0")
    a(f"s_mov_b32 s{RS[0]}, 0")
    pipe.set_addr(ph1)
    a(f"s_mov_b32 s{RS[1]}, 0")
    a("s_barrier")
    mark(a, 0)
    for i in range(3):
        for x in wreads(i): a(x)
    L, Lnb = a.label("ol"), a.label("onb")
    a(f"{L}:")
    pipe.adv_slot()
    a(f"s_cmp_eq_u32 s{RS[1]}, s55")
    a(f"s_cbranch_scc1 {Lnb}")
    a("s_barrier")
    a(f"{Lnb}:")
    for i in range(16):
        if i == 13: pipe.set_addr(ph1)
        rl = wreads((i + 3) & 15)
        a(f"s_waitcnt vmcnt({PD-1}) lgkmcnt(8)")
        a(mfma32(ACC, WF + 8*(i%4), OF + 4*(i%NS)))
        a(rl[0]); a(rl[1])
        oload(i + PD)
        if (i + PD) % 4 == 3: a(f"s_add_u32 s{S_XB}, s{S_XB}, 4096")
        a(mfma32(ACC + 16, WF + 8*(i%4) + 4, OF + 4*(i%NS)))
        a(rl[2]); a(rl[3])
    a(f"s_add_u32 s{RS[1]}, s{RS[1]}, 1")
    a(f"s_cmp_lt_u32 s{RS[1]}, 4")
    a(f"s_cbranch_scc1 {L}")
    a("s_waitcnt vmcnt(0) lgkmcnt(0)")
    mark(a, 1)
    a("s_barrier")
    EB = 3 * OP_SLOT
    a(f"v_and_b32 v1, 31, v{VL}")
    a(f"v_mul_u32_u24 v5, 144, v1")
    a(f"v_lshrrev_b32 v1, 5, v{VL}")
    a(f"v_lshl_add_u32 v5, v1, 4, v5")
    a(f"s_mul_i32 s56, s{S_W}, {32*144}")
    a(f"s_add_u32 s56, s56, {EB}")
    a(f"v_add_u32 v5, s56, v5")
    a(f"v_lshrrev_b32 v1, 3, v{VL}")
    a(f"v_and_b32 v2, 7, v{VL}")
    a(f"v_mul_u32_u24 v6, 144, v1")
    a(f"v_lshl_add_u32 v6, v2, 4, v6")
    a(f"v_add_u32 v6, s56, v6")
    a(f"v_lshlrev_b32 v7, 12, v1")
    a(f"v_lshl_add_u32 v7, v2, 4, v7")
    a(f"s_lshl_b32 s56, s{S_TM}, 2")
    a(f"s_add_u32 s56, s56, s{S_W}")
    a(f"s_lshl_b32 s56, s56, 17")
    a(f"s_lshl_b32 s57, s{S_TN}, 7")
    a(f"s_add_u32 s56, s56, s57")
    PK = 136
    for i in range(2):
        pack16(a, PK + 8*i, ACC + 16*i)
        swap_natural(a, PK + 8*i)
        a(f"ds_write_b128 v5, {vr(PK+8*i,4)} offset:{64*i}")
        a(f"ds_write_b128 v5, {vr(PK+8*i+4,4)} offset:{64*i+32}")
    a("s_waitcnt lgkmcnt(0)")
    for i in range(4):
        a(f"ds_read_b128 {vr(PK+16+4*i,4)}, v6 offset:{i*8*144}")
    for i in range(4):
        a(f"s_add_u32 s57, s56, {i*8*4096}")
        a(f"s_waitcnt lgkmcnt({3-i})")
        a(f"buffer_store_dwordx4 {vr(PK+16+4*i,4)}, v7, s[{SO}:{SO+3}], s57 offen")
    mark(a, 2)
    Lfin = a.label("fin")
    a(f"s_cmp_eq_u32 s{S_OK}, 0")
    a(f"s_cbranch_scc1 {Lfin}")
    pipe.compute(ph2, False)
    mark(a, 3)
    a("s_nop 7")
    s2_epilogue2(a, VL, ACC, S_CA, S_TT, S_EB, S_W, S_WM, S_WN, SO, S_T)
    a(f"{Lfin}:")
    Lnz = a.label("nz")
    a(f"s_add_u32 s56, s2, s{S_W}")
    a(f"s_cmp_lg_u32 s56, 0")
    a(f"s_cbranch_scc1 {Lnz}")
    a(f"v_and_b32 v1, 31, v0")
    a(f"v_lshlrev_b32 v1, 7, v1")
    for r in range(4): a(f"v_mov_b32 v{8+r}, 0")
    a(f"buffer_store_dwordx4 v[8:11], v1, s[{SWS}:{SWS+3}], 0 offen")
    a(f"{Lnz}:")
    stamp_end(a)
    dump_marks(a)
    a(f"{Lend}:")
    a("s_endpgm")
    kernel_end(a, name, 200)
```
